```python
import torch

def _softmax(x, axis=-1):
    return torch.softmax(x, dim=axis)

def _gelu(x):
    return torch.nn.functional.gelu(x, approximate='tanh')

def _silu(x):
    return torch.nn.functional.silu(x)

def _sigmoid(x):
    return torch.sigmoid(x)

def _layernorm(x, axis=-1, eps=1e-05):
    m = x.mean(dim=axis, keepdim=True)
    v = x.var(dim=axis, keepdim=True, unbiased=False)
    return (x - m) / torch.sqrt(v + eps)

def _scatter_add(tgt, idx, src, axis=0):
    return tgt.clone().index_add_(axis, idx, src)

def _segment_sum(src, seg, n):
    out = torch.zeros((n,) + src.shape[1:], dtype=src.dtype)
    return out.index_add_(0, seg, src)

def _pad(x, pw):
    flat = tuple((v for pair in reversed(pw) for v in pair))
    return torch.nn.functional.pad(x, flat)
kernel_name = 'interleave_layers__linear_attn_block__mixer_gmlp__prompt'

def setup_inputs():

    _w = lambda a: (lambda t: t.to(torch.bfloat16) if t.is_floating_point() else t)(torch.as_tensor(a))

    def _A_setup():
        B, S, D = (1, 2048, 640)
        return {'x': _w((lambda *s: torch.randn(*s, dtype=torch.bfloat16) * 0.05)(B, S, D)), 'wqkv': _w((lambda *s: torch.randn(*s, dtype=torch.bfloat16) * 0.05)(D, 3 * D)), 'wo': _w((lambda *s: torch.randn(*s, dtype=torch.bfloat16) * 0.05)(D, D))}
    _A_in = _A_setup()

    def _B_setup():
        B, S, D, F = (1, 2048, 640, 1536)
        Fh = F // 2
        return {'x': _w((lambda *s: torch.randn(*s, dtype=torch.bfloat16) * 0.05)(B, S, D)), 'w_in': _w((lambda *s: torch.randn(*s, dtype=torch.bfloat16) * 0.2)(D, 2 * Fh)), 'w_sp': _w(0.01 * (lambda *s: torch.randn(*s, dtype=torch.bfloat16) * 0.2)(S, S)), 'b_sp': _w(1.0 + 0.01 * (lambda *s: torch.randn(*s, dtype=torch.bfloat16) * 0.05)(S)), 'w_out': _w((lambda *s: torch.randn(*s, dtype=torch.bfloat16) * 0.05)(Fh, D))}
    _B_in = _B_setup()
    return {'A_x': _A_in['x'], 'A_wqkv': _A_in['wqkv'], 'A_wo': _A_in['wo'], 'B_x': _B_in['x'], 'B_w_in': _B_in['w_in'], 'B_w_sp': _B_in['w_sp'], 'B_b_sp': _B_in['b_sp'], 'B_w_out': _B_in['w_out']}

def reference(A_x, A_wqkv, A_wo, B_x, B_w_in, B_w_sp, B_b_sp, B_w_out):

    def _A_ref(x, wqkv, wo):
        B, S, D = x.shape
        H = 32
        Dh = D // H
        qkv = (lambda x, *d: x.permute(*d))((x @ wqkv).reshape(B, S, 3, H, Dh), 2, 0, 3, 1, 4)
        q, k, v = (qkv[0], qkv[1], qkv[2])
        phi = lambda t: torch.where(t > 0, t + 1, torch.exp(t)) + 1e-06
        pq, pk = (phi(q), phi(k))
        kv = torch.einsum('bhsd,bhse->bhde', pk, v)
        z = torch.einsum('bhsd->bhd', pk)
        num = torch.einsum('bhqd,bhde->bhqe', pq, kv)
        den = torch.einsum('bhqd,bhd->bhq', pq, z)[..., None] + 1e-06
        o = num / den
        return (lambda x, *d: x.permute(*d))(o, 0, 2, 1, 3).reshape(B, S, D) @ wo

    def _B_ref(x, w_in, w_sp, b_sp, w_out):
        B, S, D = x.shape
        F = w_in.shape[-1]
        Fh = F // 2
        z = _gelu(torch.einsum('bsd,df->bsf', x, w_in))
        z1 = z[..., :Fh].clone()
        z2 = _layernorm(z[..., Fh:], axis=-1)
        g = torch.einsum('ts,bsf->btf', w_sp, z2) + b_sp[None, :, None]
        return torch.einsum('bsf,fd->bsd', z1 * g, w_out)
    x = A_x
    x = x + _A_ref(_layernorm(x, axis=-1), A_wqkv, A_wo)
    x = x + _B_ref(_layernorm(x, axis=-1), B_w_in, B_w_sp, B_b_sp, B_w_out)
    x = x + _A_ref(_layernorm(x, axis=-1), A_wqkv, A_wo)
    x = x + _B_ref(_layernorm(x, axis=-1), B_w_in, B_w_sp, B_b_sp, B_w_out)
    return x
```

```python
import re

TRANS = ('v_exp_f32', 'v_log_f32', 'v_rcp_f32', 'v_rsq_f32', 'v_sqrt_f32', 'v_sin_f32', 'v_cos_f32')
RMW = ('v_fmac_f32', 'v_dot2c_f32_bf16', 'v_pk_fmac_f16')
REG_RE = re.compile(r'(?<![\w.])([vas])(?:(\d+)(?![\w\[])|\[(\d+):(\d+)\])')


def regs_of(text):
    out = []
    for m in REG_RE.finditer(text):
        k = m.group(1)
        if m.group(2) is not None:
            out.append((k, int(m.group(2))))
        else:
            out.extend((k, i) for i in range(int(m.group(3)), int(m.group(4)) + 1))
    if re.search(r'\bvcc\b', text):
        out.append(('s', 'vcc'))
    if re.search(r'\bm0\b', text):
        out.append(('s', 'm0'))
    if re.search(r'\bexec\b', text):
        out.append(('s', 'exec'))
    return out


def split_ops(s):
    ops, depth, cur = [], 0, ''
    for ch in s:
        if ch == '[':
            depth += 1
        if ch == ']':
            depth -= 1
        if ch == ',' and depth == 0:
            ops.append(cur.strip())
            cur = ''
        else:
            cur += ch
    if cur.strip():
        ops.append(cur.strip())
    return ops


class Ins:
    def __init__(self, text):
        self.text = text
        parts = text.split(None, 1)
        self.op = op = parts[0]
        ops = split_ops(parts[1]) if len(parts) > 1 else []
        self.ops = ops
        self.states = 1
        self.w, self.r = set(), set()
        self.csrc = set()
        self.ab = set()
        self.sdata = set()
        self.dpp = False
        self.lds_dma = False
        if op.startswith('v_mfma'):
            self.cls = 'mfma'
            self.passes = 8 if '32x32' in op else 4
            self.w = set(regs_of(ops[0]))
            self.ab = set(regs_of(ops[1])) | set(regs_of(ops[2]))
            self.csrc = set(regs_of(ops[3]))
            self.r = self.ab | self.csrc
        elif op.startswith('v_'):
            self.cls = 'valu'
            self.dpp = any(k in text for k in ('row_ror', 'row_shr', 'row_shl', 'quad_perm', 'row_half_mirror', 'row_mirror', 'row_bcast'))
            nd = 1
            if op.startswith(('v_add_co', 'v_sub_co', 'v_addc_co', 'v_subb_co')):
                nd = 2
            if op.startswith('v_permlane') and 'swap' in op:
                self.w = set(regs_of(ops[0])) | set(regs_of(ops[1]))
                self.r = set(self.w)
            else:
                for o in ops[:nd]:
                    self.w |= set(regs_of(o))
                for o in ops[nd:]:
                    self.r |= set(regs_of(o.split(' ')[0] if not o.startswith(('abs', '-')) else o))
                if op.split('_e')[0] in RMW or self.dpp and op.startswith('v_mov'):
                    self.r |= self.w
        elif op.startswith('ds_'):
            self.cls = 'ds'
            if op.startswith(('ds_read', 'ds_bpermute', 'ds_permute', 'ds_swizzle')):
                self.w = set(regs_of(ops[0]))
                for o in ops[1:]:
                    self.r |= set(regs_of(o.split(' ')[0]))
            else:
                for o in ops:
                    self.r |= set(regs_of(o.split(' ')[0]))
        elif op.startswith(('buffer_', 'global_')):
            self.cls = 'vmem'
            self.lds_dma = bool(re.search(r'\blds\b', text))
            if self.lds_dma:
                for o in ops:
                    self.r |= set(regs_of(o.split(' ')[0]))
                self.r.add(('s', 'm0'))
            elif 'load' in op:
                self.w = set(regs_of(ops[0]))
                for o in ops[1:]:
                    self.r |= set(regs_of(o.split(' ')[0]))
            else:
                for o in ops:
                    self.r |= set(regs_of(o.split(' ')[0]))
                if 'x4' in op or 'x3' in op:
                    self.sdata = set(regs_of(ops[0]))
        elif op.startswith(('s_load', 's_memtime', 's_memrealtime', 's_buffer_load')):
            self.cls = 'smem'
            self.w = set(regs_of(ops[0]))
            for o in ops[1:]:
                self.r |= set(regs_of(o.split(' ')[0]))
        elif op == 's_nop':
            self.cls = 'nop'
            self.states = int(ops[0]) + 1
        else:
            self.cls = 'salu'
            if op.startswith(('s_cmp', 's_cbranch', 's_branch', 's_waitcnt', 's_barrier', 's_endpgm', 's_sleep', 's_setprio', 's_bitcmp')):
                for o in ops:
                    self.r |= set(regs_of(o))
                if 'vcc' in op:
                    self.r.add(('s', 'vcc'))
            else:
                self.w = set(regs_of(ops[0])) if ops else set()
                for o in ops[1:]:
                    self.r |= set(regs_of(o))
        self.trans = op.split('_e')[0] in TRANS

    @property
    def vw(self):
        return {x for x in self.w if x[0] in 'va'}

    @property
    def vr(self):
        return {x for x in self.r if x[0] in 'va'}

    @property
    def sw(self):
        return {x for x in self.w if x[0] == 's'}

    @property
    def sr(self):
        return {x for x in self.r if x[0] == 's'}


def need(p, c):
    n = 0
    if p.cls == 'valu':
        if p.vw & c.vr:
            if c.cls == 'mfma':
                n = max(n, 2)
            if c.cls == 'valu' and (c.dpp or c.op.startswith('v_permlane')):
                n = max(n, 2)
            if c.op.startswith(('v_readfirstlane', 'v_readlane')):
                n = max(n, 1)
            if p.trans and c.cls == 'valu':
                n = max(n, 1)
        if p.sw & c.sr:
            if c.cls == 'valu':
                n = max(n, 2)
            if c.cls == 'vmem':
                n = max(n, 5)
            if c.cls in ('salu', 'smem'):
                n = max(n, 1)
    if p.cls == 'mfma':
        big = 8 if p.passes == 4 else 12
        if c.cls == 'mfma':
            if p.w & c.ab:
                n = max(n, big)
            if p.w & c.csrc and not (p.w == c.csrc and p.passes == c.passes):
                n = max(n, big - 2)
            if p.w & c.w and not (p.w == c.csrc and p.passes == c.passes):
                n = max(n, big - 2)
        elif c.cls in ('valu', 'ds', 'vmem'):
            if p.w & (c.vr | c.vw):
                n = max(n, big)
            if c.vw & p.csrc:
                n = max(n, 3 if p.passes == 4 else 7)
    if p.cls == 'salu' and ('s', 'm0') in p.w and c.cls == 'vmem' and c.lds_dma:
        n = max(n, 1)
    if p.cls == 'vmem' and p.sdata & c.vw:
        n = max(n, 2 if c.cls == 'valu' else 1)
    return n


COST = {'mfma': 8, 'valu': 4, 'ds': 4, 'vmem': 4, 'salu': 4, 'smem': 4, 'nop': 4}


class Emitter:
    def __init__(self):
        self.lines = []
        self.hist = []
        self.vm = []
        self.lg = []
        self.smem_pending = False
        self.pend = {}
        self.nid = 0
        self.ninstr = 0
        self.nnop = 0
        self.t = 0
        self.mfma_free = 0

    def raw(self, text):
        self.lines.append(text)

    def label(self, name):
        self.lines.append(name + ':')

    def comment(self, text):
        self.lines.append('; ' + text)

    def _push(self, ins):
        self.lines.append('  ' + ins.text)
        self.hist.append(ins)
        if len(self.hist) > 24:
            self.hist.pop(0)
        self.ninstr += 1
        if ins.cls == 'mfma':
            self.t = max(self.t, self.mfma_free)
            self.mfma_free = self.t + 4 * ins.passes
            self.t += 8
        elif ins.cls == 'nop':
            self.t += 4 * ins.states
        else:
            self.t += 8 if ins.trans else 4

    def vm_count_after(self, i):
        ids = [x[0] for x in self.vm]
        if i not in ids:
            return None
        k = ids.index(i)
        return sum(0 if x[1] else 1 for x in self.vm[k + 1:])

    def _wait(self, vmn=None, lgn=None):
        parts = []
        if vmn is not None:
            parts.append('vmcnt(%d)' % vmn)
        if lgn is not None:
            parts.append('lgkmcnt(%d)' % lgn)
        if parts:
            self._push(Ins('s_waitcnt ' + ' '.join(parts)))

    def _retire(self):
        live_vm = {x[0] for x in self.vm}
        live_lg = set(self.lg)
        for r in [r for r, (k, i) in self.pend.items()
                  if (k == 'vm' and i not in live_vm) or (k == 'lg' and i not in live_lg) or (k == 'sm' and not self.smem_pending)]:
            del self.pend[r]

    def wait(self, vm=None, lg=None, sm=False):
        vmn = lgn = None
        if vm is not None:
            n = self.vm_count_after(vm)
            if n is not None:
                vmn = min(n, 63)
                k = [x[0] for x in self.vm].index(vm)
                self.vm = self.vm[k + 1:]
        if sm and self.smem_pending or (lg is not None and lg in self.lg and self.smem_pending):
            lgn = 0
            self.lg = []
            self.smem_pending = False
        elif lg is not None and lg in self.lg:
            k = self.lg.index(lg)
            lgn = min(len(self.lg) - 1 - k, 15)
            self.lg = self.lg[k + 1:]
        self._wait(vmn, lgn)
        self._retire()

    def wait_all(self, vm=True, lg=True):
        self.wait(vm=self.vm[-1][0] if vm and self.vm else None,
                  lg=self.lg[-1] if lg and self.lg else None, sm=lg)

    def assume_vm_drained(self):
        self.vm = []
        self._retire()

    def wait_regs(self, regs):
        vm = lg = None
        sm = False
        order_vm = [x[0] for x in self.vm]
        for r in regs:
            if r in self.pend:
                k, i = self.pend[r]
                if k == 'vm' and i in order_vm:
                    if vm is None or order_vm.index(i) > order_vm.index(vm):
                        vm = i
                elif k == 'lg' and i in self.lg:
                    if lg is None or self.lg.index(i) > self.lg.index(lg):
                        lg = i
                elif k == 'sm':
                    sm = True
        if vm is not None or lg is not None or sm:
            self.wait(vm, lg, sm)

    def __call__(self, text, optional=False, nowaw=False):
        last = None
        for t in text.split('\n'):
            t = t.strip()
            if t:
                last = self._one(t, optional, nowaw)
        return last

    def _one(self, text, optional, nowaw):
        ins = Ins(text)
        touched = set(ins.r)
        if not (nowaw and ins.cls in ('vmem', 'ds')):
            touched |= ins.w
        self.wait_regs(touched)
        req, dist = 0, 0
        for p in reversed(self.hist):
            n = need(p, ins) - dist
            req = max(req, n)
            dist += p.states
            if dist >= 20:
                break
        while req > 0:
            k = min(req, 16)
            self._push(Ins('s_nop %d' % (k - 1)))
            self.nnop += k
            req -= k
        self._push(ins)
        if ins.cls == 'vmem':
            self.nid += 1
            self.vm.append([self.nid, optional])
            for r in ins.w:
                self.pend[r] = ('vm', self.nid)
            return self.nid
        if ins.cls == 'ds':
            self.nid += 1
            self.lg.append(self.nid)
            for r in ins.w:
                self.pend[r] = ('lg', self.nid)
            return self.nid
        if ins.cls == 'smem':
            self.smem_pending = True
            for r in ins.w:
                self.pend[r] = ('sm', 0)
        return None

    def text(self):
        return '\n'.join(self.lines) + '\n'


def vr(base, n=1, k='v'):
    return '%s%d' % (k, base) if n == 1 else '%s[%d:%d]' % (k, base, base + n - 1)


def R(base, n, k='v'):
    return [(k, base + i) for i in range(n)]
```

```python
import sys
from collections import deque
from emit import Emitter, vr, R

NAME = 'interleave_layers__linear_attn_block__mixer_gmlp__prompt_kernel'

EPOCH = 0
XCCW = 0x1000
ROWFLAG = 0x4000
PACKFLAG = 0xC000
Z2FLAG = 0xE000
ZSTAT = 0x10000
STAMP = 0x90000
KVP = 6784
KVFIN = 0xE0000
KVPART = 0x100000
PACKED = 0x480000
PKC = 675840
PK_KV, PK_WO, PK_WZ2, PK_WZ1, PK_WOUT = 0, 204800, 307200, 430080, 552960
Z2N = 0xA00000
Z2C = 393216
ACT = 0x1000000
ACT_R, ACT_H, ACT_W = 688128, 98304, 24576
WS_BYTES = 0x10000000
OOB = 0x80000000
HOP_O, HOP_X1, HOP_H, HOP_X2 = 0, 1, 2, 3

SLOT = 24576
NSLOT = 6
KVT = NSLOT * SLOT
ZT = KVT + 7680
CSF = ZT + 640
CSP = CSF + 1728
DUMMY = CSP + 2560
LDS_BYTES = 163840
CS_K, CS_Q, CS_Z2, CS_Z1 = 0, 160, 240, 336
PKV_PITCH = 144

S_WS, S_X, S_QKV, S_WO, S_WIN, S_WSP, S_WOUT, S_OUT, S_TMP = 4, 8, 12, 16, 20, 24, 28, 32, 36
sW, sC, sR, sOff4, sTag, sFast, sOff16, sOff6 = 40, 41, 42, 43, 44, 48, 49, 50
sW5, sW6, sAct, sPk, sFlag = 51, 52, 53, 54, 55
sSel01, sSel23 = 56, 57
sM = 58
sH = 66
sVal = 72
sRotKV, sRotWO, sRotWZ, sRotWOUT, sRotZ2, sRotDK, sRotDQ, sKVlds = 74, 75, 76, 77, 78, 79, 80, 81
sD, sD2, sT0, sT1, sT2, sT3, sCnt = 82, 83, 84, 85, 86, 87, 88
sPkSoff, sPkDst, sPkDst6, sWspRow = 89, 90, 91, 92
sSt = 94
sXcc = 93

vL = [1, 2, 3]
vT = [4, 5, 6]
vP = [7, 8, 9, 10, 11]
vStamp, vOne, vFl, vFF, vKR, vZR = 12, 13, 14, 15, 16, 17
vKW = [18, 19]
vOnes = 20
vB, vTag, vZ2o, vCSn, vCSt = 24, 25, 26, 27, 28
vWsp = [29, 30]
vWR = [31, 32]
vHi, vKVo, vKVo2, vRdL, vRdS, vPkW, vPkA, vPkB = 33, 34, 35, 36, 37, 38, 39, 40
vZsS, vZsL, vBp, vCPw, vCPr, vBpm, vI16 = 41, 42, 43, 44, 45, 46, 47
XT = 48
A0 = 68
ST = 148
ACC = 164
Z1 = 188
TMP = 212
vP2x = TMP + 6
W0 = 224
NW = 8

LOG2E = 1.4426950408889634
GELU_K = -2.0 * 0.7978845608028654 * LOG2E


def fbits(x):
    import struct
    return '0x%08x' % struct.unpack('<I', struct.pack('<f', x))[0]


def lanemask(fn):
    m = 0
    for l in range(64):
        if fn(l & 15, l >> 4, l):
            m |= 1 << l
    return m


class Item:
    def __init__(self, name, dma, gate=None):
        self.name, self.dma, self.gate = name, dma, gate
        self.slot = None
        self.last = None
        self.left = None
        self.visible = False

    @property
    def base(self):
        return self.slot * SLOT


class Gen:
    def __init__(self, stamps=False, stop_after=None, opts=None):
        self.e = Emitter()
        self.stamps = stamps
        self.stop_after = stop_after
        self.o = dict(dma_every=4, apre=5, aevery=3, bar_pos=9, epi_dma=12, poll_max=1 << 16)
        self.o.update(opts or {})
        self.free = deque(range(NSLOT))
        self.queue = deque()
        self.dmaq = deque()
        self.gates = set()
        self.lowq = deque()
        self.stubs = []
        self.nlab = 0
        self.nstamp = 0
        self.stamp_names = []
        self.wi = 0

    def lab(self, p):
        self.nlab += 1
        return 'L_%s%d' % (p, self.nlab)

    def stamp(self, name):
        if not self.stamps:
            return
        e = self.e
        e('s_memrealtime s[%d:%d]' % (sSt, sSt + 1))
        e.wait_all(vm=False)
        e('v_writelane_b32 v%d, s%d, %d' % (vStamp, sSt, self.nstamp))
        self.nstamp += 1
        self.stamp_names.append(name)

    def ldsaddr(self, regs, off):
        j = off >> 16
        return 'v%d offset:%d' % (regs[j], off - (j << 16))

    def rot(self, dst, srot, soff, b, nb, blk, extra):
        e = self.e
        if b == 0:
            e('s_add_u32 s%d, s%d, %d' % (dst, srot, extra))
            return
        e('s_cmp_ge_u32 s%d, %d' % (soff, nb - b))
        e('s_cselect_b32 s%d, %d, 0' % (dst, nb * blk))
        e('s_sub_u32 s%d, s%d, s%d' % (dst, srot, dst))
        e('s_add_u32 s%d, s%d, %d' % (dst, dst, b * blk + extra))

    def pump(self):
        while self.queue and self.free and (self.queue[0].gate is None or self.queue[0].gate in self.gates):
            it = self.queue.popleft()
            it.slot = self.free.popleft()
            fns = it.dma(it) if it.dma else []
            it.left = len(fns)
            for f in fns:
                self.dmaq.append((it, f))

    def open_gate(self, g):
        self.gates.add(g)
        self.pump()

    def dma(self, n=1):
        while n > 0 and self.dmaq:
            it, f = self.dmaq.popleft()
            it.last = f()
            it.left -= 1
            n -= 1
        while n > 0 and self.lowq:
            self.lowq.popleft()()
            n -= 1

    def ensure(self, it):
        assert it.slot is not None, 'no slot for ' + it.name
        while it.left:
            self.dma(1)

    def landed(self, it):
        self.ensure(it)
        if it.last is not None:
            self.e.wait(vm=it.last)

    def sync(self, need=(), release=(), lds=False):
        e = self.e
        for it in need:
            if not it.visible:
                self.landed(it)
        if lds:
            e.wait_all(vm=False)
        e('s_barrier')
        for it in need:
            it.visible = True
        for it in release:
            self.free.append(it.slot)
        self.pump()

    def it_packed(self, name, srot, soff, mul, b, nb, blk, extra, n, swoff, gate=None, sc=''):
        def mk(it):
            e = self.e
            fns = []
            for i in range(n):
                def f(i=i):
                    if i == 0:
                        if mul == 1:
                            self.rot(sD, srot, soff, b, nb, blk, extra)
                        else:
                            self.rot2(sD, srot, soff, mul, b, nb, blk, extra)
                        e('s_add_u32 m0, s%d, %d' % (swoff, it.base))
                    if i == 4:
                        e('s_add_u32 s%d, s%d, 4096' % (sD, sD))
                        e('s_add_u32 m0, m0, 4096')
                    return e('buffer_load_dwordx4 v%d, s[%d:%d], s%d offen offset:%d %s lds' % (vL[0], S_WS, S_WS + 3, sD, (i & 3) * 1024, sc))
                fns.append(f)
            return fns
        return Item(name, mk, gate)

    def rot2(self, dst, srot, soff, mul, b, nb, blk, extra):
        e = self.e
        if b == 0:
            e('s_add_u32 s%d, s%d, %d' % (dst, srot, extra))
            return
        e('s_cmp_ge_u32 s%d, %d' % (soff, -(-(nb - b) // mul)))
        e('s_cselect_b32 s%d, %d, 0' % (dst, nb * blk))
        e('s_sub_u32 s%d, s%d, s%d' % (dst, srot, dst))
        e('s_add_u32 s%d, s%d, %d' % (dst, dst, b * blk + extra))

    def it_direct_kv(self, b):
        def mk(it):
            e = self.e
            fns = []
            for i in range(5):
                def f(i=i):
                    if i == 0:
                        self.rot2(sD, sRotDK, sOff4, 2, b, 10, 64 * 3840, 0)
                    e('s_add_u32 m0, s%d, %d' % (sKVlds, it.base + i * 1024))
                    return e('buffer_load_dwordx4 v%d, s[%d:%d], s%d offen lds' % (vP[i], S_QKV, S_QKV + 3, sD))
                fns.append(f)
            return fns
        return Item('dkv%d' % b, mk)

    def it_direct_q(self, b, paired):
        def mk(it):
            e = self.e
            fns = []
            for i in range(5):
                def f(i=i):
                    vo, so = vP[i], sD
                    if i == 0 and not paired:
                        self.rot(sD, sRotDQ, sOff4, b, 5, 128 * 3840, 0)
                    if i == 0 and paired:
                        e('s_add_u32 s%d, s%d, %d' % (sD, sOff4, b))
                        e('s_cmp_ge_u32 s%d, 5' % sD)
                        e('s_cselect_b32 s%d, 5, 0' % sD2)
                        e('s_sub_u32 s%d, s%d, s%d' % (sD, sD, sD2))
                        e('s_lshl_b32 s%d, s%d, 2' % (sD, sD))
                        e('s_add_u32 s%d, s%d, s%d' % (sD, sD, sW))
                        self.paired_tile(sD, sD2)
                        e('s_mul_i32 s%d, s%d, %d' % (sD, sD, 16 * 3840))
                        e('s_mul_i32 s%d, s%d, 160' % (sT3, sC))
                        e('s_add_u32 s%d, s%d, s%d' % (sD, sD, sT3))
                        e('s_mul_i32 s%d, s%d, %d' % (sD2, sD2, 64 * 3840))
                        e('v_mad_u32_u24 v%d, v%d, s%d, v%d' % (vP2x, vHi, sD2, vP[2]))
                        e('s_add_u32 s%d, s%d, s%d' % (sD2, sD2, sD))
                    if paired and i == 2:
                        vo = vP2x
                    if paired and i > 2:
                        so = sD2
                    e('s_add_u32 m0, s%d, %d' % (sW5, it.base + i * 1024))
                    return e('buffer_load_dwordx4 v%d, s[%d:%d], s%d offen lds' % (vo, S_QKV, S_QKV + 3, so))
                fns.append(f)
            return fns
        return Item('dq%d' % b, mk)

    def paired_tile(self, sk, sfar):
        e = self.e
        e('s_mul_i32 s%d, s%d, 13108' % (sT3, sk))
        e('s_lshr_b32 s%d, s%d, 16' % (sT3, sT3))
        e('s_mul_i32 s%d, s%d, 5' % (sfar, sT3))
        e('s_sub_u32 s%d, s%d, s%d' % (sk, sk, sfar))
        e('s_mul_i32 s%d, s%d, 10' % (sT3, sT3))
        e('s_cmp_ge_u32 s%d, 2' % sk)
        e('s_cselect_b32 s%d, 1, 0' % sfar)
        e('s_add_u32 s%d, s%d, s%d' % (sT3, sT3, sfar))
        e('s_cmp_eq_u32 s%d, 4' % sk)
        e('s_cselect_b32 s%d, 1, 0' % sfar)
        e('s_lshl_b32 s%d, s%d, 1' % (sk, sk))
        e('s_add_u32 s%d, s%d, s%d' % (sk, sk, sT3))
        e('s_mul_i32 s%d, s%d, 5' % (sT3, sfar))
        e('s_sub_u32 s%d, s%d, s%d' % (sk, sk, sT3))

    def it_pack(self):
        def mk(it):
            e = self.e
            fns = []
            for i in range(6):
                def f(i=i):
                    e('s_add_u32 m0, s%d, %d' % (sW6, it.base + i * 1024))
                    return e('buffer_load_dwordx4 v%d, s[%d:%d], s%d offen lds' % (TMP + i, S_TMP, S_TMP + 3, sPkSoff))
                fns.append(f)
            return fns
        return Item('pack', mk)

    def it_wsp(self, j):
        pairs = [p for p in range(3 * j, 3 * j + 3) if p < 32]

        def mk(it):
            e = self.e
            fns = []
            for pi, p in enumerate(pairs):
                for h in range(2):
                    def f(pi=pi, p=p, h=h):
                        if h == 0:
                            self.rot2(sD, sWspRow, sOff16, 2, p, 32, 128, 0)
                            e('s_add_u32 m0, s%d, %d' % (sW6, it.base + pi * 2048))
                        return e('buffer_load_dwordx4 v%d, s[%d:%d], s%d offen offset:%d lds' % (vWsp[h], S_WSP, S_WSP + 3, sD, h * 1024))
                    fns.append(f)
            return fns
        it = Item('wsp%d' % j, mk)
        it.pairs = pairs
        return it

    def use_wsp(self, it):
        e = self.e
        self.landed(it)
        for h in range(2):
            e('v_add_u32 v%d, %d, v%d' % (TMP + h, it.base, vWR[h]))
        for pi, p in enumerate(it.pairs):
            for h in range(2):
                k = 2 * p + h
                e('ds_read_b128 a[%d:%d], v%d offset:%d' % (4 * k, 4 * k + 3, TMP + h, pi * 2048))

    def store2(self, lines):
        e = self.e
        slow, back = self.lab('slow'), self.lab('back')
        regs = set()
        from emit import Ins
        for t in lines:
            regs |= Ins(t).r
        e.wait_regs(regs)
        e('s_cmp_eq_u32 s%d, 1' % sFast)
        e('s_cbranch_scc0 ' + slow)
        last = None
        for t in lines:
            last = e(t)
        e.label(back)
        self.stubs.append((slow, [t + ' sc1' for t in lines], back))
        return last

    def poll(self, loads, check, name):
        e = self.e
        top = self.lab('poll')
        e('s_mov_b32 s%d, 0' % sCnt)
        e.label(top)
        for t in loads:
            e(t, nowaw=True)
        e('s_add_u32 s%d, s%d, 1' % (sCnt, sCnt))
        e('s_cmp_gt_u32 s%d, %d' % (sCnt, self.o['poll_max']))
        e('s_cbranch_scc1 L_abort')
        e.wait_all(lg=False)
        check()
        e('s_cbranch_vccnz ' + top)

    def row_publish(self, hop, stores, ndma=0):
        e = self.e
        last = self.store2(stores)
        self.dma(ndma)
        e.wait(vm=last)
        e('s_lshl_b32 s%d, s%d, 2' % (sT0, sC))
        e('s_add_u32 s%d, s%d, s%d' % (sT0, sT0, sFlag))
        self.store2(['buffer_store_dword v%d, v%d, s[%d:%d], s%d offen offset:%d' % (vTag, vOne, S_WS, S_WS + 3, sT0, hop * 32)])

    def row_wait(self, hop):
        e = self.e
        self.poll(['buffer_load_dword v%d, v%d, s[%d:%d], s%d offen offset:%d sc1' % (TMP + 11, vFl, S_WS, S_WS + 3, sFlag, hop * 32)],
                  lambda: e('v_cmp_ne_u32 vcc, s%d, v%d' % (sTag, TMP + 11)), 'row')

    def aloads(self, hop, nb, soff):
        e = self.e
        fns = []
        for k in range(4 * nb):
            def f(k=k):
                if k % 4 == 0:
                    b = k // 4
                    if b == 0:
                        e('s_lshl_b32 s%d, s%d, 12' % (sT1, soff))
                        e('s_add_u32 s%d, s%d, s%d' % (sT1, sT1, sAct))
                    self.rot(sT2, sT1, soff, b, nb, 4096, hop * ACT_H)
                e('buffer_load_dwordx4 v[%d:%d], v%d, s[%d:%d], s%d offen offset:%d sc1' % (A0 + 4 * k, A0 + 4 * k + 3, vL[0], S_WS, S_WS + 3, sT2, (k % 4) * 1024))
            fns.append(f)
        return deque(fns)

    def out_soff80(self, hop):
        e = self.e
        e('s_lshr_b32 s%d, s%d, 1' % (sT0, sC))
        e('s_mul_i32 s%d, s%d, 5120' % (sT0, sT0))
        e('s_add_u32 s%d, s%d, s%d' % (sT0, sT0, sAct))
        e('s_add_u32 s%d, s%d, %d' % (sT0, sT0, hop * ACT_H))
        e('s_and_b32 s%d, s%d, 1' % (sT2, sC))
        e('s_lshl_b32 s%d, s%d, 3' % (sT1, sT2))
        e('s_add_u32 s%d, s%d, s%d' % (sT1, sT1, sT0))
        e('s_add_u32 s%d, s%d, 4096' % (sT1, sT1))
        e('s_lshl_b32 s%d, s%d, 11' % (sT2, sT2))
        e('s_add_u32 s%d, s%d, s%d' % (sT0, sT0, sT2))

    def pretouch(self, hop, wide):
        e = self.e

        def f():
            if wide:
                e('s_mul_i32 s%d, s%d, 3072' % (sT3, sC))
                e('s_add_u32 s%d, s%d, s%d' % (sT3, sT3, sAct))
                e('s_add_u32 s%d, s%d, %d' % (sT3, sT3, hop * ACT_H))
                e('buffer_load_dword v%d, v%d, s[%d:%d], s%d offen sc1' % (TMP + 10, vBp, S_WS, S_WS + 3, sT3), nowaw=True)
            else:
                e('s_lshr_b32 s%d, s%d, 1' % (sT3, sC))
                e('s_mul_i32 s%d, s%d, 5120' % (sT3, sT3))
                e('s_add_u32 s%d, s%d, s%d' % (sT3, sT3, sAct))
                e('s_add_u32 s%d, s%d, %d' % (sT3, sT3, hop * ACT_H))
                e('buffer_load_dword v%d, v%d, s[%d:%d], s%d offen sc1' % (TMP + 10, vBp, S_WS, S_WS + 3, sT3), nowaw=True)
        self.lowq.append(f)

    def publish80(self, hop, src):
        e = self.e
        self.out_soff80(hop)
        p = W0
        for i in range(10):
            e('v_cvt_pk_bf16_f32 v%d, v%d, v%d' % (p + i, src + 2 * i, src + 2 * i + 1))
        st = ['buffer_store_dwordx4 v[%d:%d], v%d, s[%d:%d], s%d offen' % (p, p + 3, vL[0], S_WS, S_WS + 3, sT0),
              'buffer_store_dwordx4 v[%d:%d], v%d, s[%d:%d], s%d offen offset:1024' % (p + 4, p + 7, vL[0], S_WS, S_WS + 3, sT0),
              'buffer_store_dwordx2 v[%d:%d], v%d, s[%d:%d], s%d offen' % (p + 8, p + 9, vL[0], S_WS, S_WS + 3, sT1)]
        self.row_publish(hop, st, ndma=self.o.get('pub_dma', 3))

    def gemm(self, blocks, nk, nt, acc, aop, orient, tr=False, cinit=None, aq=None, stats=False, cs=None,
             nxt=None, side=None, prev=()):
        e, o = self.e, self.o
        seq = []
        for bi, blk in enumerate(blocks):
            for k in range(nk):
                for T in range(nt):
                    seq.append((bi, k, T, False))
            if cs is not None:
                for T in range(cs['nt']):
                    seq.append((bi, 0, T, True))
        side = deque(side or [])
        aq = aq if aq is not None else deque()
        state = {'next': 0}
        slots = {}

        def issue_read(n):
            bi, k, T, iscs = seq[n]
            blk = blocks[bi]
            assert blk.visible, blk.name
            w = W0 + 4 * (self.wi % NW)
            self.wi += 1
            slots[n] = w
            if iscs:
                if T == 0:
                    e('v_add_u32 v%d, %d, v%d' % (TMP + 9, blk.base, cs['vaddr']))
                if tr:
                    e('ds_read_b64_tr_b16 v[%d:%d], v%d offset:%d' % (w, w + 1, TMP + 9, T * 32))
                    e('ds_read_b64_tr_b16 v[%d:%d], v%d offset:%d' % (w + 2, w + 3, TMP + 9, T * 32 + 2560))
                else:
                    e('ds_read_b128 v[%d:%d], v%d offset:%d' % (w, w + 3, TMP + 9, T * 1024))
            elif tr:
                off = blk.base + k * nt * 1024 + (T // 5) * 5120 + (T % 5) * 32
                e('ds_read_b64_tr_b16 v[%d:%d], %s' % (w, w + 1, self.ldsaddr(vT, off)))
                e('ds_read_b64_tr_b16 v[%d:%d], %s' % (w + 2, w + 3, self.ldsaddr(vT, off + 2560)))
            else:
                e('ds_read_b128 v[%d:%d], %s' % (w, w + 3, self.ldsaddr(vL, blk.base + (k * nt + T) * 1024)))

        def top_up(upto):
            while state['next'] < min(upto, len(seq)) and blocks[seq[state['next']][0]].visible:
                issue_read(state['next'])
                state['next'] += 1

        depth = NW - (1 if tr else 0)
        natot = len(aq)
        for _ in range(o['apre']):
            if aq:
                aq.popleft()()
        top_up(depth)
        pending_release = list(prev)
        pos = 0
        since_dma = since_a = 0
        for n, (bi, k, T, iscs) in enumerate(seq):
            if n > 0 and seq[n - 1][0] != bi:
                pos = 0
            ks = bi * nk + k
            while aq and natot - len(aq) <= ks:
                aq.popleft()()
            if stats and T == 0 and not iscs:
                a = aop(ks)
                e('v_mfma_f32_16x16x32_bf16 v[%d:%d], %s, v[%d:%d], %s' % (ST, ST + 3, a, vOnes, vOnes + 3, '0' if ks == 0 else vr(ST, 4)))
                e('v_mfma_f32_16x16x32_bf16 v[%d:%d], %s, %s, %s' % (ST + 4, ST + 7, a, a, '0' if ks == 0 else vr(ST + 4, 4)))
            top_up(n + 1)
            w = slots[n]
            if n % 2 == 0 and n + 1 in slots:
                e.wait_regs(R(slots[n + 1], 4))
            if iscs:
                d = 'a[%d:%d]' % (cs['acc'] + 4 * T, cs['acc'] + 4 * T + 3)
                e('v_mfma_f32_16x16x32_bf16 %s, v[%d:%d], v[%d:%d], %s' % (d, vOnes, vOnes + 3, w, w + 3, '0' if bi == 0 else d))
            else:
                d = vr(acc + 4 * T, 4)
                c = d if ks > 0 else (cinit(T) if cinit else '0')
                ops = (vr(w, 4), aop(ks)) if orient == 'T' else (aop(ks), vr(w, 4))
                e('v_mfma_f32_16x16x32_bf16 %s, %s, %s, %s' % (d, ops[0], ops[1], c))
            top_up(n + 1 + depth)
            pos += 1
            since_a += 1
            since_dma += 1
            if pos == o['bar_pos']:
                nb = blocks[bi + 1] if bi + 1 < len(blocks) else nxt
                self.sync(need=[nb] if nb is not None else [], release=pending_release)
                pending_release = [blocks[bi]]
                top_up(n + 1 + depth)
            elif aq and since_a >= o['aevery']:
                aq.popleft()()
                since_a = 0
            elif not aq and since_dma >= o['dma_every'] and (self.dmaq or self.lowq):
                self.dma(1)
                since_dma = 0
            elif side and n % 2 == 1:
                side.popleft()()
        while side:
            side.popleft()()
        return pending_release

    def stats_post(self):
        e = self.e
        q = ST + 10
        for j in range(4):
            e('v_cndmask_b32 v%d, 0, v%d, s[%d:%d]' % (q + j, ST + 4 + j, sM + 2 * j, sM + 2 * j + 1))
        for sh in (8, 4, 2, 1):
            for j in range(4):
                e('v_add_f32_dpp v%d, v%d, v%d row_ror:%d row_mask:0xf bank_mask:0xf' % (q + j, q + j, q + j, sh))
        self.norm_consts(ST, q, 640.0, ST, ST + 4)
        for dst, src in ((ST + 8, ST), (ST + 9, ST + 4)):
            e('v_mov_b32 v%d, v%d' % (dst, src))
            for j in range(1, 4):
                e('v_cndmask_b32 v%d, v%d, v%d, s[%d:%d]' % (dst, dst, src + j, sM + 2 * j, sM + 2 * j + 1))
            e('ds_bpermute_b32 v%d, v%d, v%d' % (dst, vBpm, dst))

    def norm_consts(self, s, q, n, rstd, nmr):
        e = self.e
        e('s_mov_b32 s%d, %s' % (sT3, fbits(1.0 / n)))
        for j in range(4):
            e('v_mul_f32 v%d, %s, v%d' % (nmr + j, fbits(-1.0 / n), s + j))
        for j in range(4):
            e('v_mul_f32 v%d, s%d, v%d' % (q + j, sT3, q + j))
        for j in range(4):
            e('v_fma_f32 v%d, -v%d, v%d, v%d' % (q + j, nmr + j, nmr + j, q + j))
        for j in range(4):
            e('v_max_f32 v%d, 0, v%d' % (q + j, q + j))
        for j in range(4):
            e('v_add_f32 v%d, %s, v%d' % (q + j, fbits(1e-5), q + j))
        for j in range(4):
            e('v_rsq_f32 v%d, v%d' % (rstd + j, q + j))
        for j in range(4):
            e('v_mul_f32 v%d, v%d, v%d' % (nmr + j, nmr + j, rstd + j))

    def cs_write(self, acc, nt, toff_expr_reg):
        e = self.e
        e('s_mov_b32 exec_lo, 0xffff\ns_mov_b32 exec_hi, 0')
        for T in range(nt):
            e('ds_write_b32 v%d, a%d offset:%d' % (toff_expr_reg, acc + 4 * T, T * 256))
        e('s_mov_b64 exec, -1')

    def cs_final(self, nt, csoff, parts, dst):
        e = self.e
        t = W0
        for T in range(nt):
            b = t + parts * T
            e('ds_read_b%d v[%d:%d], v%d offset:%d' % (32 * parts, b, b + parts - 1, vCPr, T * 256))
        for T in range(nt):
            b = t + parts * T
            if parts == 4:
                e('v_pk_add_f32 v[%d:%d], v[%d:%d], v[%d:%d]' % (b, b + 1, b, b + 1, b + 2, b + 3))
            e('v_add_f32 v%d, v%d, v%d' % (dst + T, b, b + 1))
        e('s_mov_b32 exec_lo, 0xffff\ns_mov_b32 exec_hi, 0')
        for T in range(nt):
            e('ds_write_b32 v%d, v%d offset:%d' % (vCSn, dst + T, (csoff + 16 * T) * 4))
        e('s_mov_b64 exec, -1')

    def fold_n(self, acc, nt, cs):
        e = self.e
        t = TMP
        for T in range(nt):
            c = cs + T
            cp, sel = (c, 0) if c % 2 == 0 else (c - 1, 1)
            for h in range(2):
                a = acc + 4 * T + 2 * h
                tt = t + 2 * ((2 * T + h) % 3)
                e('v_pk_mul_f32 v[%d:%d], v[%d:%d], v[%d:%d] op_sel:[0,%d] op_sel_hi:[1,%d]' % (tt, tt + 1, ST + 4 + 2 * h, ST + 5 + 2 * h, cp, cp + 1, sel, sel))
                e('v_pk_fma_f32 v[%d:%d], v[%d:%d], v[%d:%d], v[%d:%d]' % (a, a + 1, a, a + 1, ST + 2 * h, ST + 2 * h + 1, tt, tt + 1))
            self.epi_tick()

    def fold_t(self, acc, nt, csoff):
        e = self.e
        t = W0
        for T in range(nt):
            e('ds_read_b128 v[%d:%d], v%d offset:%d' % (t + 4 * T, t + 4 * T + 3, vCSt, (csoff + 16 * T) * 4))
        for T in range(nt):
            for h in range(2):
                a, c = acc + 4 * T + 2 * h, t + 4 * T + 2 * h
                e('v_pk_mul_f32 v[%d:%d], v[%d:%d], v[%d:%d] op_sel:[0,1] op_sel_hi:[1,1]' % (c, c + 1, c, c + 1, ST + 8, ST + 9))
                e('v_pk_fma_f32 v[%d:%d], v[%d:%d], v[%d:%d], v[%d:%d] op_sel_hi:[1,0,1]' % (a, a + 1, a, a + 1, ST + 8, ST + 9, c, c + 1))
            self.epi_tick()

    def epi_tick(self):
        if self.e.t - getattr(self, 'last_epi', 0) >= 4 * self.o['epi_dma']:
            self.dma(1)
            self.last_epi = self.e.t

    def phi(self, acc, n):
        e = self.e
        t = W0
        e('s_mov_b32 s%d, %s' % (sT3, fbits(1e-6)))
        for b in range(0, n, 4):
            tt = t + (b % 8)
            for j in range(4):
                e('v_mul_f32 v%d, %s, v%d' % (tt + j, fbits(LOG2E), acc + b + j))
            for j in range(4):
                e('v_min_f32 v%d, 0, v%d' % (tt + j, tt + j))
            for j in range(4):
                e('v_exp_f32 v%d, v%d' % (tt + j, tt + j))
            for j in range(4):
                e('v_max_f32 v%d, 0, v%d' % (acc + b + j, acc + b + j))
            for j in range(4):
                e('v_add_f32 v%d, s%d, v%d' % (tt + j, sT3, tt + j))
            for h in range(2):
                a = acc + b + 2 * h
                e('v_pk_add_f32 v[%d:%d], v[%d:%d], v[%d:%d]' % (a, a + 1, a, a + 1, tt + 2 * h, tt + 2 * h + 1))
            self.epi_tick()

    def gelu(self, acc, n):
        e = self.e
        k = TMP
        e('v_mov_b32 v%d, %s' % (k, fbits(GELU_K * 0.044715)))
        e('v_mov_b32 v%d, %s' % (k + 1, fbits(GELU_K)))
        for b in range(0, n, 8):
            t = W0 + (b % 16)
            for h in range(4):
                a = acc + b + 2 * h
                e('v_pk_mul_f32 v[%d:%d], v[%d:%d], v[%d:%d]' % (t + 2 * h, t + 2 * h + 1, a, a + 1, a, a + 1))
            for h in range(4):
                e('v_pk_fma_f32 v[%d:%d], v[%d:%d], v[%d:%d], v[%d:%d] op_sel:[0,0,1] op_sel_hi:[1,0,1]' % (t + 2 * h, t + 2 * h + 1, t + 2 * h, t + 2 * h + 1, k, k + 1, k, k + 1))
            for h in range(4):
                a = acc + b + 2 * h
                e('v_pk_mul_f32 v[%d:%d], v[%d:%d], v[%d:%d]' % (t + 2 * h, t + 2 * h + 1, t + 2 * h, t + 2 * h + 1, a, a + 1))
            for j in range(8):
                e('v_exp_f32 v%d, v%d' % (t + j, t + j))
            self.epi_tick()
            for h in range(4):
                e('v_pk_add_f32 v[%d:%d], v[%d:%d], 1.0 op_sel_hi:[1,0]' % (t + 2 * h, t + 2 * h + 1, t + 2 * h, t + 2 * h + 1))
            for j in range(8):
                e('v_rcp_f32 v%d, v%d' % (t + j, t + j))
            self.epi_tick()
            for h in range(4):
                a = acc + b + 2 * h
                e('v_pk_mul_f32 v[%d:%d], v[%d:%d], v[%d:%d]' % (a, a + 1, a, a + 1, t + 2 * h, t + 2 * h + 1))

    def tag_regs(self, r):
        for j in range(4):
            self.e('v_bfi_b32 v%d, v%d, s%d, v%d' % (r + j, vFF, sTag + j, r + j))

    def tag_bad(self, r, t, dst):
        e = self.e
        e('v_perm_b32 v%d, v%d, v%d, s%d' % (t, r + 1, r, sSel01))
        e('v_perm_b32 v%d, v%d, v%d, s%d' % (t + 1, r + 3, r + 2, sSel23))
        e('v_or_b32 v%d, v%d, v%d' % (t, t, t + 1))
        e('v_cmp_ne_u32 %s, s%d, v%d' % (dst, sTag, t))

    def srd(self, s, ptr, nbytes):
        e = self.e
        e('s_mov_b32 s%d, s%d' % (s, ptr))
        e('s_mov_b32 s%d, s%d' % (s + 1, ptr + 1))
        e('s_mov_b32 s%d, %d' % (s + 2, nbytes))
        e('s_mov_b32 s%d, 0x20000' % (s + 3))

    def prologue(self):
        e = self.e
        K = 76
        e('s_cmp_ge_u32 s2, 256')
        e('s_cbranch_scc1 L_abort')
        e('s_load_dwordx16 s[%d:%d], s[0:1], 0' % (K, K + 15))
        e('s_load_dwordx2 s[%d:%d], s[0:1], 64' % (K + 16, K + 17))
        e('s_load_dwordx2 s[%d:%d], s[0:1], 80' % (K + 18, K + 19))
        e('v_lshrrev_b32 v2, 6, v0')
        e('v_and_b32 v0, 63, v0')
        e('v_readfirstlane_b32 s%d, v2' % sW)
        e('v_lshlrev_b32 v%d, 4, v0' % vL[0])
        e('s_and_b32 s%d, s2, 7' % sR)
        e('s_lshl_b32 s%d, s%d, 2' % (sR, sR))
        e('s_lshr_b32 s3, s2, 6')
        e('s_add_u32 s%d, s%d, s3' % (sR, sR))
        e('s_lshr_b32 s%d, s2, 3' % sC)
        e('s_and_b32 s%d, s%d, 7' % (sC, sC))
        e('s_add_u32 s%d, s%d, s%d' % (sOff4, sR, sC))
        e('s_mul_i32 s2, s%d, 13108' % sOff4)
        e('s_lshr_b32 s2, s2, 16')
        e('s_mul_i32 s2, s2, 5')
        e('s_sub_u32 s%d, s%d, s2' % (sOff4, sOff4))
        e('s_mul_i32 s%d, s3, 3' % sOff6)
        e('s_lshr_b32 s%d, s%d, 1' % (sOff6, sOff6))
        e('s_lshl_b32 s%d, s3, 1' % sOff16)
        e('s_add_u32 s%d, s%d, s%d' % (sOff16, sOff16, sC))
        e('s_lshl_b32 s%d, s%d, 1' % (sOff16, sOff16))
        e('s_and_b32 s%d, s%d, 15' % (sOff16, sOff16))
        e('s_mul_i32 s%d, s%d, 5120' % (sW5, sW))
        e('s_mul_i32 s%d, s%d, 6144' % (sW6, sW))
        a, b, c = TMP, TMP + 1, TMP + 2
        e('v_lshrrev_b32 v%d, 3, v0' % a)
        e('v_and_b32 v%d, 7, v0' % b)
        e('v_xor_b32 v%d, v%d, v%d' % (b, b, a))
        e('v_lshlrev_b32 v%d, 4, v%d' % (b, b))
        e('v_lshl_add_u32 v%d, v%d, 12, v%d' % (vWsp[0], a, b))
        e('v_add_u32 v%d, %d, v%d' % (vWsp[1], 8 * 4096 - 1024, vWsp[0]))
        e('v_mul_u32_u24 v%d, 1280, v%d' % (a, a))
        e('v_add_u32 v%d, v%d, v%d' % (a, a, b))
        e('v_add_u32 v%d, %d, v%d' % (b, 8 * 1280 - 1024, a))
        e.wait(sm=True)
        self.srd(S_X, K + 0, 2621440)
        self.srd(S_WS, K + 18, WS_BYTES)
        e('s_load_dword s%d, s[%d:%d], %d glc' % (sTag, K + 18, K + 19, EPOCH))
        self.srd(S_QKV, K + 2, 640 * 3840)
        e('s_lshl_b32 s2, s%d, 2' % sR)
        e('s_add_u32 s2, s2, s%d' % sW)
        e('s_mul_i32 s3, s2, %d' % (16 * 1280))
        e('s_lshl_b32 s0, s%d, 8' % sOff4)
        e('s_add_u32 s3, s3, s0')
        e('s_mul_i32 s0, s%d, %d' % (sW, SLOT))
        xs = []
        for p in range(10):
            self.rot2(1, 3, sOff4, 2, p, 10, 128, 0)
            e('s_add_u32 m0, s0, %d' % (p * 2048))
            e('buffer_load_dwordx4 v%d, s[%d:%d], s1 offen lds' % (a, S_X, S_X + 3))
            xs.append(e('buffer_load_dwordx4 v%d, s[%d:%d], s1 offen offset:1024 lds' % (b, S_X, S_X + 3)))
        self.xitems = []
        for i in range(4):
            it = Item('x%d' % i, None)
            it.slot = self.free.popleft()
            self.xitems.append(it)
        self.srd(S_WO, K + 4, 640 * 1280)
        self.srd(S_WIN, K + 8, 640 * 3072)
        self.srd(S_WSP, K + 10, 2048 * 4096)
        self.srd(S_TMP, K + 12, 4096)
        self.srd(S_WOUT, K + 14, 768 * 1280)
        self.srd(S_OUT, K + 16, 2621440)
        for i in range(5):
            e('v_add_u32 v%d, %d, v0' % (a, 64 * i))
            e('v_mul_u32_u24 v%d, 6554, v%d' % (b, a))
            e('v_lshrrev_b32 v%d, 16, v%d' % (b, b))
            e('v_mul_u32_u24 v%d, 10, v%d' % (c, b))
            e('v_sub_u32 v%d, v%d, v%d' % (a, a, c))
            e('v_mul_u32_u24 v%d, 3840, v%d' % (b, b))
            e('v_lshl_add_u32 v%d, v%d, 4, v%d' % (vP[i], a, b))
        e('s_and_b32 s0, s%d, 1' % sW)
        e('s_lshr_b32 s1, s%d, 1' % sW)
        e('s_mul_i32 s%d, s0, 10240' % sKVlds)
        e('s_mul_i32 s3, s1, 5120')
        e('s_add_u32 s%d, s%d, s3' % (sKVlds, sKVlds))
        e('s_mul_i32 s%d, s%d, %d' % (sRotDQ, sOff4, 128 * 3840))
        e('s_mul_i32 s3, s%d, 160' % sC)
        e('s_add_u32 s%d, s%d, s3' % (sRotDQ, sRotDQ))
        e('s_mul_i32 s0, s0, %d' % (32 * 3840))
        e('s_add_u32 s%d, s%d, s0' % (sRotDK, sRotDQ))
        e('s_add_u32 s1, s1, 1')
        e('s_mul_i32 s1, s1, 1280')
        e('s_add_u32 s%d, s%d, s1' % (sRotDK, sRotDK))
        e('s_mul_i32 s0, s%d, %d' % (sW, 32 * 3840))
        e('s_add_u32 s%d, s%d, s0' % (sRotDQ, sRotDQ))
        self.pump()
        self.dma(10)
        e('v_and_b32 v%d, 15, v0' % vI16)
        e('v_lshlrev_b32 v%d, 1, v%d' % (a, vI16))
        e('s_lshl_b32 s0, s2, 5')
        e('buffer_load_ushort v%d, v%d, s[%d:%d], s0 offen' % (vB, a, S_TMP, S_TMP + 3))
        return xs

    def consts(self):
        e = self.e
        a, b, c, g = TMP + 8, TMP + 9, TMP + 10, TMP + 11
        L = 0
        e('v_lshrrev_b32 v%d, 4, v0' % g)
        e('v_add_u32 v%d, 0x10000, v%d' % (vL[1], vL[0]))
        e('v_add_u32 v%d, 0x20000, v%d' % (vL[2], vL[0]))
        e('v_lshrrev_b32 v%d, 2, v%d' % (a, vI16))
        e('v_lshl_add_u32 v%d, v%d, 2, v%d' % (a, g, a))
        e('v_and_b32 v%d, 3, v0' % b)
        e('v_lshlrev_b32 v%d, 3, v%d' % (b, b))
        e('v_mul_u32_u24 v%d, 192, v%d' % (c, a))
        e('v_add_u32 v%d, v%d, v%d' % (TMP + 6, c, b))
        e('v_add_u32 v%d, s%d, v%d' % (TMP + 6, sW6, TMP + 6))
        e('v_mul_u32_u24 v%d, 160, v%d' % (a, a))
        e('v_add_u32 v%d, v%d, v%d' % (vT[0], a, b))
        e('v_add_u32 v%d, 0x10000, v%d' % (vT[1], vT[0]))
        e('v_add_u32 v%d, 0x20000, v%d' % (vT[2], vT[0]))
        e('v_mov_b32 v%d, 0x%x' % (a, OOB))
        e('v_cmp_eq_u32 vcc, 0, v0')
        e('v_cndmask_b32 v%d, v%d, 0, vcc' % (vOne, a))
        e('v_and_b32 v%d, 7, v0' % vFl)
        e('v_lshlrev_b32 v%d, 2, v%d' % (vFl, vFl))
        e('v_mov_b32 v%d, 0xff' % vFF)
        e('v_mul_u32_u24 v%d, 384, v%d' % (vKR, g))
        e('v_lshl_add_u32 v%d, v%d, 3, v%d' % (vKR, vI16, vKR))
        e('v_add_u32 v%d, %d, v%d' % (vKR, KVT, vKR))
        e('v_lshl_add_u32 v%d, v%d, 5, v%d' % (vZR, g, b))
        e('v_add_u32 v%d, %d, v%d' % (vZR, ZT, vZR))
        for j in range(4):
            e('v_mov_b32 v%d, 0x3f803f80' % (vOnes + j))
        e('v_and_b32 v%d, 1, v%d' % (b, g))
        e('v_lshlrev_b32 v%d, 10, v%d' % (b, b))
        e('v_lshrrev_b32 v%d, 1, v%d' % (c, g))
        e('v_lshl_add_u32 v%d, v%d, 8, v%d' % (b, c, b))
        e('v_lshl_add_u32 v%d, v%d, 4, v%d' % (vZ2o, vI16, b))
        e('v_lshlrev_b32 v%d, 2, v%d' % (vCSn, vI16))
        e('v_add_u32 v%d, %d, v%d' % (vCSn, CSF, vCSn))
        e('v_lshlrev_b32 v%d, 4, v%d' % (vCSt, g))
        e('v_add_u32 v%d, %d, v%d' % (vCSt, CSF, vCSt))
        e('v_lshlrev_b32 v%d, 4, v%d' % (vCPr, vI16))
        e('v_add_u32 v%d, %d, v%d' % (vCPr, CSP, vCPr))
        e('s_lshl_b32 s0, s%d, 2' % sW)
        e('v_add_u32 v%d, s0, v%d' % (vCPw, vCPr))
        e('v_and_b32 v%d, 7, v0' % b)
        e('v_bfe_u32 v%d, v0, 3, 1' % c)
        e('v_lshlrev_b32 v%d, 10, v%d' % (c, c))
        e('v_lshl_add_u32 v%d, v%d, 7, v%d' % (c, b, c))
        e('v_add_u32 v%d, s%d, v%d' % (c, sW6, c))
        for h in range(2):
            e('v_add_u32 v%d, %d, v%d' % (vWR[h], 4 * h, g))
            e('v_xor_b32 v%d, v%d, v%d' % (vWR[h], vWR[h], b))
            e('v_lshl_add_u32 v%d, v%d, 4, v%d' % (vWR[h], vWR[h], c))
        e('v_lshrrev_b32 v%d, 5, v0' % vHi)
        e('v_and_b32 v%d, 31, v0' % b)
        e('v_mad_u32_u24 v%d, v%d, 21, v%d' % (c, vHi, b))
        e('v_lshlrev_b32 v%d, 4, v%d' % (c, c))
        e('v_cmp_gt_u32 vcc, 21, v%d' % b)
        e('v_cndmask_b32 v%d, v%d, v%d, vcc' % (vKVo, a, c))
        e('v_cmp_gt_u32 vcc, 21, v0')
        e('v_cndmask_b32 v%d, v%d, v%d, vcc' % (vKVo2, a, c))
        e('v_mul_u32_u24 v%d, %d, v%d' % (vPkW, PKV_PITCH, vI16))
        e('v_lshl_add_u32 v%d, v%d, 3, v%d' % (vPkW, g, vPkW))
        e('s_lshl_b32 s0, s%d, 5' % sW)
        e('v_add_u32 v%d, s0, v%d' % (vPkW, vPkW))
        e('s_mul_i32 s0, s%d, 20' % sW)
        e('v_add_u32 v%d, s0, v%d' % (c, b))
        e('v_mul_u32_u24 v%d, %d, v%d' % (vPkA, PKV_PITCH, c))
        e('v_lshl_add_u32 v%d, v%d, 4, v%d' % (vPkA, vHi, vPkA))
        e('v_add_u32 v%d, 80, v%d' % (c, c))
        e('v_mov_b32 v%d, 160' % vPkB)
        e('v_cmp_gt_u32 vcc, 20, v%d' % b)
        e('v_cndmask_b32 v%d, v%d, v%d, vcc' % (c, vPkB, c))
        e('v_mul_u32_u24 v%d, %d, v%d' % (vPkB, PKV_PITCH, c))
        e('v_lshl_add_u32 v%d, v%d, 4, v%d' % (vPkB, vHi, vPkB))
        e('v_mul_u32_u24 v%d, %d, v%d' % (vRdL, KVP, vI16))
        e('v_lshl_add_u32 v%d, v%d, 4, v%d' % (vRdL, g, vRdL))
        e('v_lshlrev_b32 v%d, 4, v%d' % (c, g))
        e('v_cmp_eq_u32 vcc, 0, v%d' % vI16)
        e('v_cndmask_b32 v%d, v%d, v%d, vcc' % (vRdS, a, c))
        for m in range(2):
            d = vKW[m]
            e('v_add_u32 v%d, %d, v0' % (b, 64 * m))
            e('v_mul_u32_u24 v%d, 3121, v%d' % (c, b))
            e('v_lshrrev_b32 v%d, 16, v%d' % (c, c))
            e('v_mul_u32_u24 v%d, 21, v%d' % (d, c))
            e('v_sub_u32 v%d, v%d, v%d' % (b, b, d))
            e('s_mul_i32 s0, s%d, 5' % sW)
            e('v_add_u32 v%d, s0, v%d' % (c, c))
            e('v_lshrrev_b32 v%d, 2, v%d' % (d, c))
            e('v_lshlrev_b32 v%d, 4, v%d' % (d, d))
            e('v_sub_u32 v%d, v%d, v%d' % (d, b, d))
            e('s_mul_i32 s0, s%d, 20' % sW)
            e('s_add_u32 s0, s0, 16')
            e('v_add_u32 v%d, s0, v%d' % (d, d))
            e('v_lshlrev_b32 v%d, 3, v%d' % (d, d))
            e('v_mul_u32_u24 v%d, 384, v%d' % (TMP + 7, c))
            e('v_add_u32 v%d, v%d, v%d' % (d, d, TMP + 7))
            e('v_add_u32 v%d, %d, v%d' % (d, KVT, d))
            e('s_lshl_b32 s0, s%d, 3' % sW)
            e('s_add_u32 s0, s0, %d' % ZT)
            e('v_lshl_add_u32 v%d, v%d, 5, s0' % (c, c))
            e('v_cmp_eq_u32 vcc, 20, v%d' % b)
            e('v_cndmask_b32 v%d, v%d, v%d, vcc' % (d, d, c))
            if m == 1:
                e('v_mov_b32 v%d, %d' % (c, DUMMY))
                e('v_cmp_gt_u32 vcc, 41, v0')
                e('v_cndmask_b32 v%d, v%d, v%d, vcc' % (d, c, d))
        e('v_lshl_add_u32 v%d, v%d, 2, v%d' % (b, g, vI16))
        e('v_lshlrev_b32 v%d, 4, v%d' % (b, b))
        e('v_cmp_gt_u32 vcc, 4, v%d' % vI16)
        e('v_cndmask_b32 v%d, v%d, v%d, vcc' % (vZsS, a, b))
        e('v_and_b32 v%d, 7, v0' % b)
        e('v_lshlrev_b32 v%d, 8, v%d' % (b, b))
        e('v_lshl_add_u32 v%d, v%d, 6, v%d' % (b, g, b))
        e('v_bfe_u32 v%d, v0, 3, 1' % c)
        e('v_lshl_add_u32 v%d, v%d, 5, v%d' % (vZsL, c, b))
        e('v_lshlrev_b32 v%d, 7, v0' % b)
        e('v_cmp_gt_u32 vcc, 40, v0')
        e('v_cndmask_b32 v%d, v%d, v%d, vcc' % (vBp, a, b))
        e('v_lshrrev_b32 v%d, 2, v%d' % (b, vI16))
        e('v_lshl_add_u32 v%d, v%d, 4, v%d' % (b, b, vI16))
        e('v_lshlrev_b32 v%d, 2, v%d' % (vBpm, b))
        if self.stamps:
            e('v_mov_b32 v%d, 0' % vStamp)
        e('s_mov_b32 s%d, 0x0c0c0400' % sSel01)
        e('s_mov_b32 s%d, 0x04000c0c' % sSel23)

        def mask(s, m):
            e('s_mov_b32 s%d, 0x%x' % (s, m & 0xffffffff))
            e('s_mov_b32 s%d, 0x%x' % (s + 1, m >> 32))
        for j in range(4):
            mask(sM + 2 * j, lanemask(lambda i, g, l: i == 4 * g + j))
        for T in (1, 2, 3):
            mask(sH + 2 * (T - 1), lanemask(lambda i, g, l: (4 * T + g) // 5 == T))
        mask(sVal, lanemask(lambda i, g, l: l < 41))
        e('s_mul_i32 s%d, s%d, %d' % (sAct, sR, ACT_R))
        e('s_mul_i32 s0, s%d, %d' % (sW, ACT_W))
        e('s_add_u32 s%d, s%d, s0' % (sAct, sAct))
        e('s_add_u32 s%d, s%d, %d' % (sAct, sAct, ACT))
        e('s_mul_i32 s%d, s%d, %d' % (sPk, sC, PKC))
        e('s_add_u32 s%d, s%d, %d' % (sPk, sPk, PACKED))
        e('s_lshl_b32 s%d, s2, 8' % sFlag)
        e('s_add_u32 s%d, s%d, %d' % (sFlag, sFlag, ROWFLAG))
        for dst, off, mul, wo in ((sRotKV, sOff4, 40960, sW5), (sRotWO, sOff4, 20480, sW5), (sRotWZ, sOff4, 24576, sW6), (sRotWOUT, sOff6, 20480, sW5)):
            e('s_mul_i32 s%d, s%d, %d' % (dst, off, mul))
            e('s_add_u32 s%d, s%d, s%d' % (dst, dst, wo))
            e('s_add_u32 s%d, s%d, s%d' % (dst, dst, sPk))
        e('s_mul_i32 s%d, s%d, 24576' % (sRotZ2, sOff16))
        e('s_add_u32 s%d, s%d, s%d' % (sRotZ2, sRotZ2, sW6))
        e('s_mul_i32 s0, s%d, %d' % (sC, Z2C))
        e('s_add_u32 s%d, s%d, s0' % (sRotZ2, sRotZ2))
        e('s_lshl_b32 s%d, s2, 16' % sWspRow)
        e('s_lshl_b32 s0, s%d, 8' % sOff16)
        e('s_add_u32 s%d, s%d, s0' % (sWspRow, sWspRow))
        for j in range(4):
            e('v_mov_b32 v%d, 0' % (W0 + j))
        e('s_lshl_b32 s0, s%d, 10' % sW)
        e('s_add_u32 s0, s0, %d' % KVT)
        e('v_add_u32 v%d, s0, v%d' % (b, vL[0]))
        for i in range(2):
            e('ds_write_b128 v%d, v[%d:%d] offset:%d' % (b, W0, W0 + 3, i * 4096))
        e('v_lshrrev_b32 v%d, 2, v%d' % (b, vL[0]))
        e('v_add_u32 v%d, %d, v%d' % (b, KVT + 8192, b))
        e('s_mov_b32 exec_hi, 0')
        e('ds_write_b32 v%d, v%d' % (b, W0))
        e('s_mov_b64 exec, -1')
        e('s_getreg_b32 s%d, hwreg(HW_REG_XCC_ID, 0, 4)' % sXcc)
        e('s_add_u32 s%d, s%d, 1' % (sTag, sTag))
        for j in range(1, 4):
            e('s_lshr_b32 s%d, s%d, %d' % (sTag + j, sTag, 8 * j))
        e('v_mov_b32 v%d, s%d' % (vTag, sTag))
        e('s_lshl_b32 s0, s%d, 8' % sR)
        e('s_lshl_b32 s1, s%d, 3' % sC)
        e('s_add_u32 s0, s0, s1')
        e('s_add_u32 s0, s0, %d' % XCCW)
        e('v_mov_b32 v%d, s%d' % (W0 + 4, sTag))
        e('v_mov_b32 v%d, s%d' % (W0 + 5, sXcc))
        e('buffer_store_dwordx2 v[%d:%d], v%d, s[%d:%d], s0 offen sc1' % (W0 + 4, W0 + 5, vOne, S_WS, S_WS + 3))
        e('buffer_load_dword v%d, v%d, s[%d:%d], s%d offen sc1' % (ST + 15, vFl, S_WS, S_WS + 3, sFlag), nowaw=True)
        e('buffer_load_dword v%d, v%d, s[%d:%d], s%d offen offset:128 sc1' % (ST + 15, vFl, S_WS, S_WS + 3, sFlag), nowaw=True)

    def pack_setup(self):
        e = self.e
        u, m, k, far, stride, col, dst = 0, 1, 3, sD2, sT0, sT1, sT2
        e('s_min_u32 s%d, s2, 123' % u)
        e('s_mul_i32 s%d, s%d, 3277' % (m, u))
        e('s_lshr_b32 s%d, s%d, 16' % (m, m))
        e('s_min_u32 s%d, s%d, 5' % (m, m))
        e('s_mul_i32 s%d, s%d, 20' % (k, m))
        e('s_sub_u32 s%d, s%d, s%d' % (k, u, k))
        table = [(S_QKV, 3840, 1280, 160, PK_KV, 10240), (S_QKV, 3840, 2560, 160, PK_KV + 5120, 10240),
                 (S_WO, 1280, 0, 160, PK_WO, 5120), (S_WIN, 3072, 1536, 192, PK_WZ2, 6144),
                 (S_WIN, 3072, 0, 192, PK_WZ1, 6144), (S_WOUT, 1280, 0, 160, PK_WOUT, 5120)]
        for i, (srd, st, c0, cm, d0, dm) in enumerate(table):
            if i == 0:
                for j in range(3):
                    e('s_mov_b32 s%d, s%d' % (S_TMP + j, srd + j))
                e('s_mov_b32 s%d, %d' % (stride, st))
                e('s_mov_b32 s%d, %d' % (col, c0))
                e('s_mov_b32 s%d, %d' % (sCnt, cm))
                e('s_mov_b32 s%d, %d' % (dst, d0))
                e('s_mov_b32 s%d, %d' % (sPkDst, dm))
            else:
                e('s_cmp_eq_u32 s%d, %d' % (m, i))
                for j in range(3):
                    e('s_cselect_b32 s%d, s%d, s%d' % (S_TMP + j, srd + j, S_TMP + j))
                e('s_cselect_b32 s%d, %d, s%d' % (stride, st, stride))
                e('s_cselect_b32 s%d, %d, s%d' % (col, c0, col))
                e('s_cselect_b32 s%d, %d, s%d' % (sCnt, cm, sCnt))
                e('s_cselect_b32 s%d, %d, s%d' % (dst, d0, dst))
                e('s_cselect_b32 s%d, %d, s%d' % (sPkDst, dm, sPkDst))
        e('s_mul_i32 s%d, s%d, s%d' % (sPkDst, sPkDst, k))
        e('s_add_u32 s%d, s%d, s%d' % (sPkDst, sPkDst, dst))
        e('s_add_u32 s%d, s%d, s%d' % (sPkDst, sPkDst, sPk))
        e('s_cmp_gt_u32 s2, 123')
        e('s_cselect_b32 s%d, 0x%x, s%d' % (sPkDst, OOB, sPkDst))
        e('s_add_u32 s%d, s%d, 5120' % (sPkDst6, sPkDst))
        e('s_cmp_eq_u32 s%d, 192' % sCnt)
        e('s_cselect_b32 s%d, s%d, 0x%x' % (sPkDst6, sPkDst6, OOB))
        e('s_mul_i32 s%d, s%d, s%d' % (sCnt, sCnt, sC))
        e('s_add_u32 s%d, s%d, s%d' % (col, col, sCnt))
        e('s_lshl_b32 s%d, s%d, 1' % (sCnt, k))
        self.paired_tile(k, far)
        e('s_cmp_eq_u32 s%d, 5' % m)
        e('s_cselect_b32 s%d, s%d, s%d' % (k, sCnt, k))
        e('s_cselect_b32 s%d, 0, s%d' % (far, far))
        e('s_mul_i32 s%d, s%d, s%d' % (k, k, stride))
        e('s_lshl_b32 s%d, s%d, 4' % (k, k))
        e('s_add_u32 s%d, s%d, s%d' % (sPkSoff, k, col))
        e('s_lshl_b32 s%d, s%d, 6' % (far, far))
        a, b, c = TMP + 8, TMP + 9, TMP + 10
        for i in range(6):
            e('v_add_u32 v%d, %d, v0' % (a, 64 * i))
            e('v_mul_u32_u24 v%d, 5462, v%d' % (b, a))
            e('v_lshrrev_b32 v%d, 16, v%d' % (b, b))
            e('v_mul_u32_u24 v%d, 12, v%d' % (c, b))
            e('v_sub_u32 v%d, v%d, v%d' % (a, a, c))
            e('v_lshrrev_b32 v%d, 4, v%d' % (c, b))
            e('v_mad_u32_u24 v%d, v%d, s%d, v%d' % (b, c, far, b))
            e('v_mul_u32_u24 v%d, s%d, v%d' % (b, stride, b))
            e('v_lshl_add_u32 v%d, v%d, 4, v%d' % (TMP + i, a, b))

    def x_frags(self, xs):
        e = self.e
        t = W0
        g = TMP + 11
        e('v_and_b32 v%d, 7, v0' % (t + 4))
        e('v_bfe_u32 v%d, v0, 3, 1' % (t + 5))
        e('v_lshlrev_b32 v%d, 10, v%d' % (t + 5, t + 5))
        e('v_lshl_add_u32 v%d, v%d, 7, v%d' % (t + 5, t + 4, t + 5))
        e('v_and_b32 v%d, 1, v%d' % (t + 6, g))
        e('v_lshl_add_u32 v%d, v%d, 3, v%d' % (t + 5, t + 6, t + 5))
        e('s_mul_i32 s0, s%d, %d' % (sW, SLOT))
        e('v_add_u32 v%d, s0, v%d' % (t + 5, t + 5))
        e('v_lshrrev_b32 v%d, 1, v%d' % (t + 6, g))
        for qq in range(4):
            e('v_add_u32 v%d, %d, v%d' % (t + qq, 2 * qq, t + 6))
            e('v_xor_b32 v%d, v%d, v%d' % (t + qq, t + qq, t + 4))
            e('v_lshl_add_u32 v%d, v%d, 4, v%d' % (t + qq, t + qq, t + 5))
        for T in range(5):
            e('s_mul_i32 s0, s%d, 160' % sC)
            e('s_add_u32 s0, s0, %d' % (32 * T))
            e('s_bfe_u32 s1, s0, 0x30004')
            e('s_lshr_b32 s0, s0, 7')
            e('s_add_u32 s0, s0, 10')
            e('s_lshl_b32 s3, s%d, 1' % sOff4)
            e('s_sub_u32 s0, s0, s3')
            e('s_cmp_ge_u32 s0, 10')
            e('s_cselect_b32 s3, 10, 0')
            e('s_sub_u32 s0, s0, s3')
            e('s_lshl_b32 s0, s0, 11')
            d = t + 8 + T
            e('v_add_u32 v%d, s1, v%d' % (d, t + 6))
            e('v_xor_b32 v%d, v%d, v%d' % (d, d, t + 4))
            e('v_lshl_add_u32 v%d, v%d, 4, v%d' % (d, d, t + 5))
            e('v_add_u32 v%d, s0, v%d' % (d, d))
        for p in range(10):
            e.wait(vm=xs[p])
            for hh in range(2):
                k = 2 * p + hh
                e('ds_read_b64 v[%d:%d], v%d offset:%d' % (A0 + 4 * k, A0 + 4 * k + 1, t + 2 * hh, p * 2048))
                e('ds_read_b64 v[%d:%d], v%d offset:%d' % (A0 + 4 * k + 2, A0 + 4 * k + 3, t + 2 * hh + 1, p * 2048))
        for T in range(5):
            e('ds_read_b64 v[%d:%d], v%d' % (t + 16 + 2 * T, t + 17 + 2 * T, t + 8 + T))
        for T in range(5):
            for h in range(2):
                s = t + 16 + 2 * T + h
                e('v_lshlrev_b32 v%d, 16, v%d' % (XT + 4 * T + 2 * h, s))
                e('v_and_b32 v%d, 0xffff0000, v%d' % (XT + 4 * T + 2 * h + 1, s))
        e('v_lshlrev_b32 v%d, 16, v%d' % (vB, vB))

    def do_pack(self, it):
        e = self.e
        self.landed(it)
        e('v_add_u32 v%d, %d, v%d' % (TMP + 6, it.base, TMP + 6))
        for T in range(6):
            w = W0 + 4 * T
            e('ds_read_b64_tr_b16 v[%d:%d], v%d offset:%d' % (w, w + 1, TMP + 6, T * 32))
            e('ds_read_b64_tr_b16 v[%d:%d], v%d offset:%d' % (w + 2, w + 3, TMP + 6, T * 32 + 3072))
        e('s_add_u32 s%d, s%d, 4096' % (sT0, sPkDst))
        last = None
        for T in range(6):
            w = W0 + 4 * T
            so, off = (sPkDst, T * 1024) if T < 4 else ((sT0, 0) if T == 4 else (sPkDst6, 0))
            last = e('buffer_store_dwordx4 v[%d:%d], v%d, s[%d:%d], s%d offen offset:%d sc1' % (w, w + 3, vL[0], S_WS, S_WS + 3, so, off))
        return last

    def build_stream(self):
        S = self.S = []
        for L in range(2):
            d = {}
            if L == 0:
                d['kv'] = [self.it_direct_kv(b) for b in range(10)]
                d['pack'] = self.it_pack()
            else:
                d['kv'] = [self.it_packed('kv%d' % b, sRotKV, sOff4, 2, b, 10, 20480, PK_KV, 5, sW5) for b in range(10)]
            d['pkv'] = Item('pkv', None)
            d['q'] = [self.it_direct_q(b, L == 1) for b in range(5)]
            d['wo'] = [self.it_packed('wo%d' % b, sRotWO, sOff4, 1, b, 5, 20480, PK_WO, 5, sW5, gate='pack') for b in range(5)]
            d['wz2'] = [self.it_packed('wz2%d' % b, sRotWZ, sOff4, 1, b, 5, 24576, PK_WZ2, 6, sW6) for b in range(5)]
            d['wz1'] = [self.it_packed('wz1%d' % b, sRotWZ, sOff4, 1, b, 5, 24576, PK_WZ1, 6, sW6) for b in range(5)]
            if L == 0:
                d['wsp'] = [self.it_wsp(j) for j in range(11)]
            d['z2n'] = [self.it_packed('z2n%d' % b, sRotZ2, sOff16, 1, b, 16, 24576, Z2N + L * 8 * Z2C, 6, sW6, gate='z2_%d' % L, sc='sc1') for b in range(16)]
            d['wout'] = [self.it_packed('wout%d' % b, sRotWOUT, sOff6, 1, b, 6, 20480, PK_WOUT, 5, sW5) for b in range(6)]
            if L == 1:
                d['fin'] = Item('fin', None)
            S.append(d)
            order = d['kv'] + ([d['pack']] if L == 0 else []) + [d['pkv']] + d['q'] + d['wo'] + d['wz2'] + d['wz1']
            order += (d['wsp'] if L == 0 else []) + d['z2n'] + d['wout'] + ([d['fin']] if L == 1 else [])
            self.queue.extend(order)

    def areg(self, k):
        return vr(A0 + 4 * k, 4)

    def layer(self, L, rel):
        e, d = self.e, self.S[L]
        h0 = 4 * L
        e.comment('layer %d: k/v projection' % L)
        aq = None
        if L == 1:
            self.sync(need=[d['kv'][0]], release=rel)
            rel = []
            self.row_wait(HOP_X2)
            self.stamp('x2ready')
            aq = self.aloads(HOP_X2, 5, sOff4)
        cs = None
        if L == 0:
            e('v_add_u32 v%d, s%d, v%d' % (TMP + 7, sKVlds, vT[0]))
            cs = dict(nt=5, acc=0, vaddr=TMP + 7)
        self.pretouch(h0 + HOP_O, False)
        rel = self.gemm(d['kv'], 2, 10, ACC, self.areg, 'N', tr=(L == 0), aq=aq, stats=True, cs=cs, prev=rel)
        self.stamp('kv_loop')
        pkv = d['pkv']
        CSR = W0 + 20
        if L == 0:
            self.ensure(d['pack'])
            e('s_lshr_b32 s%d, s%d, 1' % (sT0, sW))
            e('s_mul_i32 s%d, s%d, 1280' % (sT0, sT0))
            e('s_and_b32 s%d, s%d, 1' % (sT1, sW))
            e('s_lshl_b32 s%d, s%d, 2' % (sT1, sT1))
            e('s_add_u32 s%d, s%d, s%d' % (sT0, sT0, sT1))
            e('v_add_u32 v%d, s%d, v%d' % (TMP + 8, sT0, vCPr))
            self.cs_write(0, 5, TMP + 8)
            self.sync(release=rel, lds=True)
            self.stats_post()
            self.cs_final(10, CS_K, 2, CSR + 0)
        else:
            self.sync(release=rel)
            for T in range(10):
                e('ds_read_b32 v%d, v%d offset:%d' % (CSR + T, vCSn, (CS_K + 16 * T) * 4))
            self.stats_post()
        self.fold_n(ACC, 10, CSR)
        self.phi(ACC, 20)
        assert pkv.slot is not None
        e('v_add_u32 v%d, %d, v%d' % (TMP + 8, pkv.base, vPkW))
        for T in range(10):
            p = W0 + 2 * T
            e('v_cvt_pk_bf16_f32 v%d, v%d, v%d' % (p, ACC + 4 * T, ACC + 4 * T + 1))
            e('v_cvt_pk_bf16_f32 v%d, v%d, v%d' % (p + 1, ACC + 4 * T + 2, ACC + 4 * T + 3))
            e('ds_write_b64 v%d, v[%d:%d] offset:%d' % (TMP + 8, p, p + 1, T * 16 * PKV_PITCH))
        e('s_mov_b32 exec_lo, 0x10001\ns_mov_b32 exec_hi, 0x10001')
        e('ds_write_b64 v%d, v[%d:%d] offset:%d' % (TMP + 8, vOnes, vOnes + 1, 160 * PKV_PITCH))
        e('s_mov_b64 exec, -1')
        e('v_add_u32 v%d, %d, v%d' % (TMP + 8, pkv.base, vPkA))
        e('v_add_u32 v%d, %d, v%d' % (TMP + 9, pkv.base, vPkB))
        self.sync(lds=True)
        for m in range(4):
            e('ds_read_b128 v[%d:%d], v%d offset:%d' % (W0 + 8 * m, W0 + 8 * m + 3, TMP + 8, 32 * m))
            e('ds_read_b128 v[%d:%d], v%d offset:%d' % (W0 + 8 * m + 4, W0 + 8 * m + 7, TMP + 9, 32 * m))
        for m in range(4):
            e('v_mfma_f32_32x32x16_bf16 v[%d:%d], v[%d:%d], v[%d:%d], %s' % (ACC, ACC + 15, W0 + 8 * m, W0 + 8 * m + 3, W0 + 8 * m + 4, W0 + 8 * m + 7, '0' if m == 0 else vr(ACC, 16)))
        e('s_lshl_b32 s%d, s%d, 5' % (sT0, sC))
        e('s_add_u32 s%d, s%d, s%d' % (sT0, sT0, sR))
        e('s_mul_i32 s%d, s%d, %d' % (sT0, sT0, KVP))
        e('s_mul_i32 s%d, s%d, 1680' % (sT1, sW))
        e('s_add_u32 s%d, s%d, s%d' % (sT0, sT0, sT1))
        e('s_add_u32 s%d, s%d, %d' % (sT0, sT0, KVPART + L * 256 * KVP))
        for m in range(3):
            self.tag_regs(ACC + 4 * m)
            e('buffer_store_dwordx4 v[%d:%d], v%d, s[%d:%d], s%d offen offset:%d sc1' % (ACC + 4 * m, ACC + 4 * m + 3, vKVo if m < 2 else vKVo2, S_WS, S_WS + 3, sT0, 672 * m))
        self.stamp('kv_pub')
        rel = [pkv]
        if L == 0:
            packlast = self.do_pack(d['pack'])
            rel.append(d['pack'])
        e.comment('layer %d: q projection' % L)
        self.sync(need=[d['q'][0]], release=rel, lds=True)
        cs = None
        if L == 0:
            e('v_add_u32 v%d, s%d, v%d' % (TMP + 7, sW5, vT[0]))
            cs = dict(nt=5, acc=0, vaddr=TMP + 7)
            e.wait(vm=packlast)
            e('s_lshl_b32 s%d, s%d, 9' % (sT0, sC))
            e('s_lshl_b32 s%d, s2, 2' % sT1)
            e('s_add_u32 s%d, s%d, s%d' % (sT0, sT0, sT1))
            e('s_add_u32 s%d, s%d, %d' % (sT0, sT0, PACKFLAG))
            e('buffer_store_dword v%d, v%d, s[%d:%d], s%d offen sc1' % (vTag, vOne, S_WS, S_WS + 3, sT0))
        rel = self.gemm(d['q'], 4, 5, ACC, self.areg, 'T', tr=True, cs=cs)
        self.stamp('q_loop')
        if L == 0:
            self.cs_write(0, 5, vCPw)
        self.sync(release=rel, lds=True)
        g0 = ACC + 20
        e('s_min_u32 s%d, s2, 104' % sT0)
        e('s_lshl_b32 s%d, s%d, 6' % (sT0, sT0))
        e('s_mul_i32 s%d, s%d, %d' % (sT1, sC, 32 * KVP))
        e('s_add_u32 s%d, s%d, s%d' % (sT1, sT1, sT0))
        e('s_add_u32 s%d, s%d, %d' % (sT1, sT1, KVPART + L * 256 * KVP))
        e('s_add_u32 s%d, s%d, %d' % (sT2, sT1, 16 * KVP))

        def chk1():
            self.tag_bad(g0, g0 + 8, 's[%d:%d]' % (sSt, sSt + 1))
            self.tag_bad(g0 + 4, g0 + 10, 'vcc')
            e('s_or_b64 vcc, vcc, s[%d:%d]' % (sSt, sSt + 1))
        self.poll(['buffer_load_dwordx4 v[%d:%d], v%d, s[%d:%d], s%d offen sc1' % (g0, g0 + 3, vRdL, S_WS, S_WS + 3, sT1),
                   'buffer_load_dwordx4 v[%d:%d], v%d, s[%d:%d], s%d offen sc1' % (g0 + 4, g0 + 7, vRdL, S_WS, S_WS + 3, sT2)], chk1, 'red')
        for h in range(2):
            e('v_pk_add_f32 v[%d:%d], v[%d:%d], v[%d:%d]' % (g0 + 2 * h, g0 + 2 * h + 1, g0 + 2 * h, g0 + 2 * h + 1, g0 + 4 + 2 * h, g0 + 5 + 2 * h))
        for sh in (8, 4, 2, 1):
            for j in range(4):
                e('v_add_f32_dpp v%d, v%d, v%d row_ror:%d row_mask:0xf bank_mask:0xf' % (g0 + j, g0 + j, g0 + j, sh))
        self.tag_regs(g0)
        e('s_mul_i32 s%d, s%d, %d' % (sT1, sC, KVP))
        e('s_add_u32 s%d, s%d, %d' % (sT1, sT1, KVFIN + L * 8 * KVP))
        e('s_add_u32 s%d, s%d, s%d' % (sT0, sT0, sT1))
        e('s_cmp_gt_u32 s2, 104')
        e('s_cselect_b32 s%d, 0x%x, s%d' % (sT0, OOB, sT0))
        e('buffer_store_dwordx4 v[%d:%d], v%d, s[%d:%d], s%d offen sc1' % (g0, g0 + 3, vRdS, S_WS, S_WS + 3, sT0))
        self.stamp('red_pub')
        if L == 0:
            e('s_lshl_b32 s%d, s%d, 8' % (sT0, sR))
            e('s_add_u32 s%d, s%d, %d' % (sT0, sT0, XCCW))
            e('v_lshlrev_b32 v%d, 1, v%d' % (g0 + 8, vFl))
            e('s_lshl_b32 s%d, s%d, 9' % (sT2, sC))
            e('s_add_u32 s%d, s%d, %d' % (sT2, sT2, PACKFLAG))
            e('v_lshrrev_b32 v%d, 1, v%d' % (g0 + 9, vL[0]))

            def chk0():
                e('v_cmp_ne_u32 s[%d:%d], s%d, v%d' % (sSt, sSt + 1, sTag, g0 + 4))
                e('v_cmp_ne_u32 vcc, s%d, v%d' % (sTag, g0 + 6))
                e('s_or_b64 s[%d:%d], vcc, s[%d:%d]' % (sSt, sSt + 1, sSt, sSt + 1))
                e('v_cmp_ne_u32 vcc, s%d, v%d' % (sTag, g0 + 7))
                e('s_or_b64 vcc, vcc, s[%d:%d]' % (sSt, sSt + 1))
            self.poll(['buffer_load_dwordx2 v[%d:%d], v%d, s[%d:%d], s%d offen sc1' % (g0 + 4, g0 + 5, g0 + 8, S_WS, S_WS + 3, sT0),
                       'buffer_load_dwordx2 v[%d:%d], v%d, s[%d:%d], s%d offen sc1' % (g0 + 6, g0 + 7, g0 + 9, S_WS, S_WS + 3, sT2)], chk0, 'pk')
            e('v_cmp_ne_u32 vcc, s%d, v%d' % (sXcc, g0 + 5))
            e('s_cmp_eq_u64 vcc, 0')
            e('s_cselect_b32 s%d, %d, 0' % (sFast, 0 if self.o.get('force_slow') else 1))
            self.open_gate('pack')
            self.cs_final(5, CS_Q, 4, g0 + 10)
        self.fold_t(ACC, 5, CS_Q)
        self.phi(ACC, 20)
        PQ = g0 + 8
        for i in range(10):
            e('v_cvt_pk_bf16_f32 v%d, v%d, v%d' % (PQ + i, ACC + 2 * i, ACC + 2 * i + 1))
        self.dma(self.o.get('kv_wait_dma', 4))
        e('s_mul_i32 s%d, s%d, 1680' % (sT0, sW))
        e('s_mul_i32 s%d, s%d, %d' % (sT1, sC, KVP))
        e('s_add_u32 s%d, s%d, s%d' % (sT0, sT0, sT1))
        e('s_add_u32 s%d, s%d, %d' % (sT0, sT0, KVFIN + L * 8 * KVP))

        def chk2():
            self.tag_bad(W0 + 4, W0 + 8, 's[%d:%d]' % (sSt, sSt + 1))
            self.tag_bad(W0, W0 + 10, 'vcc')
            e('s_and_b64 s[%d:%d], s[%d:%d], s[%d:%d]' % (sSt, sSt + 1, sSt, sSt + 1, sVal, sVal + 1))
            e('s_or_b64 vcc, vcc, s[%d:%d]' % (sSt, sSt + 1))
        self.poll(['buffer_load_dwordx4 v[%d:%d], v%d, s[%d:%d], s%d offen sc1' % (W0, W0 + 3, vL[0], S_WS, S_WS + 3, sT0),
                   'buffer_load_dwordx4 v[%d:%d], v%d, s[%d:%d], s%d offen offset:1024 sc1' % (W0 + 4, W0 + 7, vL[0], S_WS, S_WS + 3, sT0)], chk2, 'fin')
        self.stamp('kv_fin')
        for m in range(2):
            e('v_cvt_pk_bf16_f32 v%d, v%d, v%d' % (W0 + 4 * m, W0 + 4 * m, W0 + 4 * m + 1))
            e('v_cvt_pk_bf16_f32 v%d, v%d, v%d' % (W0 + 4 * m + 1, W0 + 4 * m + 2, W0 + 4 * m + 3))
            e('ds_write_b64 v%d, v[%d:%d]' % (vKW[m], W0 + 4 * m, W0 + 4 * m + 1))
        self.sync(lds=True)
        DEN = A0 + 40
        fr = A0
        pairs = [(U, T) for U in range(5) for T in range(5) if abs(U - T) <= 1]
        for T in range(5):
            e('ds_read_b64 v[%d:%d], v%d offset:%d' % (fr + 2 * T, fr + 2 * T + 1, vZR, T * 128))
        for i, (U, T) in enumerate(pairs):
            e('ds_read_b64 v[%d:%d], v%d offset:%d' % (fr + 10 + 2 * i, fr + 11 + 2 * i, vKR, T * 1536 + (U - T + 1) * 128))
        for T in range(5):
            e('v_mfma_f32_16x16x16_bf16 v[%d:%d], v[%d:%d], v[%d:%d], %s' % (DEN, DEN + 3, fr + 2 * T, fr + 2 * T + 1, PQ + 2 * T, PQ + 2 * T + 1, '0' if T == 0 else vr(DEN, 4)))
        seen = set()
        for i, (U, T) in enumerate(pairs):
            dd = vr(ACC + 4 * U, 4)
            e('v_mfma_f32_16x16x16_bf16 %s, v[%d:%d], v[%d:%d], %s' % (dd, fr + 10 + 2 * i, fr + 11 + 2 * i, PQ + 2 * T, PQ + 2 * T + 1, dd if U in seen else '0'))
            seen.add(U)
        for j in range(4):
            e('v_add_f32 v%d, %s, v%d' % (DEN + j, fbits(1e-6), DEN + j))
        for j in range(4):
            e('v_rcp_f32 v%d, v%d' % (DEN + j, DEN + j))
        RS = DEN + 4
        e('v_mov_b32 v%d, v%d' % (RS, DEN))
        for T in (1, 2, 3):
            e('v_cndmask_b32 v%d, v%d, v%d, s[%d:%d]' % (RS + 2 * T, DEN + T - 1, DEN + T, sH + 2 * (T - 1), sH + 2 * (T - 1) + 1))
        e('v_mov_b32 v%d, v%d' % (RS + 8, DEN + 3))
        for T in range(5):
            for h in range(2):
                a = ACC + 4 * T + 2 * h
                e('v_pk_mul_f32 v[%d:%d], v[%d:%d], v[%d:%d] op_sel_hi:[1,0]' % (a, a + 1, a, a + 1, RS + 2 * T, RS + 2 * T + 1))
        self.publish80(h0 + HOP_O, ACC)
        self.stamp('o_pub')
        if self.stop_after == ('o', L):
            return None
        e.comment('layer %d: attention output projection' % L)
        self.sync(need=[d['wo'][0]])
        self.row_wait(h0 + HOP_O)
        self.stamp('o_ready')
        self.pretouch(h0 + HOP_X1, False)
        rel = self.gemm(d['wo'], 4, 5, XT, self.areg, 'T', cinit=lambda T: vr(XT + 4 * T, 4), aq=self.aloads(h0 + HOP_O, 5, sOff4))
        self.stamp('wo_loop')
        self.sync(release=rel)
        self.publish80(h0 + HOP_X1, XT)
        self.stamp('x1_pub')
        if self.stop_after == ('x1', L):
            return None
        e.comment('layer %d: gated half of the input projection' % L)
        self.sync(need=[d['wz2'][0]])
        e('s_lshl_b32 s%d, s2, 11' % sT3)
        e('s_add_u32 s%d, s%d, %d' % (sT3, sT3, ZSTAT + L * 128 * 2048))
        e('buffer_load_dword v%d, v%d, s[%d:%d], s%d offen sc1' % (TMP + 10, vZsL, S_WS, S_WS + 3, sT3), nowaw=True)
        self.row_wait(h0 + HOP_X1)
        self.stamp('x1_ready')
        cs = None
        if L == 0:
            e('v_add_u32 v%d, s%d, v%d' % (TMP + 7, sW6, vL[0]))
            cs = dict(nt=6, acc=208, vaddr=TMP + 7)
        self.pretouch(h0 + HOP_H, True)
        rel = self.gemm(d['wz2'], 4, 6, ACC, self.areg, 'N', aq=self.aloads(h0 + HOP_X1, 5, sOff4), stats=True, cs=cs)
        self.stamp('z2_loop')
        CSR = W0 + 24
        if L == 0:
            self.cs_write(208, 6, vCPw)
            self.sync(release=rel, lds=True)
            self.stats_post()
            self.cs_final(6, CS_Z2, 4, CSR)
        else:
            self.sync(release=rel)
            for T in range(6):
                e('ds_read_b32 v%d, v%d offset:%d' % (CSR + T, vCSn, (CS_Z2 + 16 * T) * 4))
            self.stats_post()
        self.fold_n(ACC, 6, CSR)
        self.gelu(ACC, 24)
        SM, SQ = W0, W0 + 4
        for h in range(2):
            e('v_pk_add_f32 v[%d:%d], v[%d:%d], v[%d:%d]' % (SM + 2 * h, SM + 2 * h + 1, ACC + 2 * h, ACC + 2 * h + 1, ACC + 4 + 2 * h, ACC + 5 + 2 * h))
            e('v_pk_mul_f32 v[%d:%d], v[%d:%d], v[%d:%d]' % (SQ + 2 * h, SQ + 2 * h + 1, ACC + 2 * h, ACC + 2 * h + 1, ACC + 2 * h, ACC + 2 * h + 1))
        for T in range(1, 6):
            for h in range(2):
                a = ACC + 4 * T + 2 * h
                if T > 1:
                    e('v_pk_add_f32 v[%d:%d], v[%d:%d], v[%d:%d]' % (SM + 2 * h, SM + 2 * h + 1, SM + 2 * h, SM + 2 * h + 1, a, a + 1))
                e('v_pk_fma_f32 v[%d:%d], v[%d:%d], v[%d:%d], v[%d:%d]' % (SQ + 2 * h, SQ + 2 * h + 1, a, a + 1, a, a + 1, SQ + 2 * h, SQ + 2 * h + 1))
        for sh in (8, 4, 2, 1):
            for j in range(8):
                e('v_add_f32_dpp v%d, v%d, v%d row_ror:%d row_mask:0xf bank_mask:0xf' % (SM + j, SM + j, SM + j, sh))
        G = W0 + 8
        e('v_mov_b32 v%d, v%d' % (G, SM))
        e('v_mov_b32 v%d, v%d' % (G + 1, SQ))
        for j in range(1, 4):
            e('v_cmp_eq_u32 vcc, %d, v%d' % (j, vI16))
            e('v_cndmask_b32 v%d, v%d, v%d, vcc' % (G, G, SM + j))
            e('v_cndmask_b32 v%d, v%d, v%d, vcc' % (G + 1, G + 1, SQ + j))
        e('v_mov_b32 v%d, s%d' % (G + 2, sTag))
        e('v_mov_b32 v%d, s%d' % (G + 3, sTag))
        e('s_lshl_b32 s%d, s2, 11' % sT0)
        e('s_add_u32 s%d, s%d, %d' % (sT0, sT0, ZSTAT + L * 128 * 2048))
        e('s_lshl_b32 s%d, s%d, 8' % (sT1, sC))
        e('s_add_u32 s%d, s%d, s%d' % (sT1, sT1, sT0))
        self.store2(['buffer_store_dwordx4 v[%d:%d], v%d, s[%d:%d], s%d offen' % (G, G + 3, vZsS, S_WS, S_WS + 3, sT1)])
        self.stamp('zs_pub')

        def chk3():
            e('v_cmp_ne_u32 s[%d:%d], s%d, v%d' % (sSt, sSt + 1, sTag, G + 6))
            e('v_cmp_ne_u32 vcc, s%d, v%d' % (sTag, G + 10))
            e('s_or_b64 vcc, vcc, s[%d:%d]' % (sSt, sSt + 1))
        self.poll(['buffer_load_dwordx4 v[%d:%d], v%d, s[%d:%d], s%d offen sc1' % (G + 4, G + 7, vZsL, S_WS, S_WS + 3, sT0),
                   'buffer_load_dwordx4 v[%d:%d], v%d, s[%d:%d], s%d offen offset:16 sc1' % (G + 8, G + 11, vZsL, S_WS, S_WS + 3, sT0)], chk3, 'zs')
        self.stamp('zs_ready')
        four = (G + 4, G + 5, G + 8, G + 9)
        for mod in ('quad_perm:[1,0,3,2]', 'quad_perm:[2,3,0,1]', 'row_half_mirror'):
            for r in four:
                e('v_add_f32_dpp v%d, v%d, v%d %s row_mask:0xf bank_mask:0xf' % (r, r, r, mod))
        for i, r in enumerate(four):
            e('v_mov_b32_dpp v%d, v%d row_ror:8 row_mask:0xf bank_mask:0xf' % (G + 12 + i, r))
        e('v_cmp_gt_u32 vcc, 8, v%d' % vI16)
        for i, (dst_lo, dst_hi) in enumerate(((SM, SM + 2), (SQ, SQ + 2), (SM + 1, SM + 3), (SQ + 1, SQ + 3))):
            e('v_cndmask_b32 v%d, v%d, v%d, vcc' % (dst_lo, G + 12 + i, four[i]))
            e('v_cndmask_b32 v%d, v%d, v%d, vcc' % (dst_hi, four[i], G + 12 + i))
        self.norm_consts(SM, SQ, 768.0, SM, G)
        P = W0 + 12
        for T in range(6):
            for h in range(2):
                a = ACC + 4 * T + 2 * h
                e('v_pk_fma_f32 v[%d:%d], v[%d:%d], v[%d:%d], v[%d:%d]' % (a, a + 1, a, a + 1, SM + 2 * h, SM + 2 * h + 1, G + 2 * h, G + 2 * h + 1))
                e('v_cvt_pk_bf16_f32 v%d, v%d, v%d' % (P + 2 * T + h, a, a + 1))
        e('s_lshr_b32 s%d, s2, 1' % sT0)
        e('s_mul_i32 s%d, s%d, 6144' % (sT0, sT0))
        e('s_and_b32 s%d, s%d, 1' % (sT1, sW))
        e('s_lshl_b32 s%d, s%d, 9' % (sT1, sT1))
        e('s_add_u32 s%d, s%d, s%d' % (sT0, sT0, sT1))
        e('s_mul_i32 s%d, s%d, %d' % (sT1, sC, Z2C))
        e('s_add_u32 s%d, s%d, s%d' % (sT0, sT0, sT1))
        e('s_add_u32 s%d, s%d, %d' % (sT0, sT0, Z2N + L * 8 * Z2C))
        e('s_add_u32 s%d, s%d, 4096' % (sT1, sT0))
        z2last = None
        for p in range(3):
            b = P + 4 * p
            e('v_permlane16_swap_b32 v%d, v%d' % (b, b + 2))
            e('v_permlane16_swap_b32 v%d, v%d' % (b + 1, b + 3))
            z2last = e('buffer_store_dwordx4 v[%d:%d], v%d, s[%d:%d], s%d offen offset:%d sc1' % (b, b + 3, vZ2o, S_WS, S_WS + 3, sT0 if p < 2 else sT1, (p % 2) * 2048))
        self.stamp('z2_st')
        e.comment('layer %d: linear half of the input projection' % L)
        self.sync(need=[d['wz1'][0]])

        def z2flag():
            e.wait(vm=z2last)
            e('s_lshl_b32 s%d, s%d, 9' % (sT0, sC))
            e('s_lshl_b32 s%d, s2, 2' % sT1)
            e('s_add_u32 s%d, s%d, s%d' % (sT0, sT0, sT1))
            e('s_add_u32 s%d, s%d, %d' % (sT0, sT0, Z2FLAG + L * 4096))
            e('buffer_store_dword v%d, v%d, s[%d:%d], s%d offen sc1' % (vTag, vOne, S_WS, S_WS + 3, sT0))
        nskip = self.o.get('z2flag_at', 24)
        side = [(lambda: None)] * nskip + [z2flag]
        cs = dict(nt=6, acc=232, vaddr=TMP + 7) if L == 0 else None
        rel = self.gemm(d['wz1'], 4, 6, Z1, self.areg, 'T', cs=cs, side=side)
        self.stamp('z1_loop')
        if L == 0:
            self.cs_write(232, 6, vCPw)
            self.sync(release=rel, lds=True)
            self.cs_final(6, CS_Z1, 4, W0 + 24)
        else:
            self.sync(release=rel)
        self.fold_t(Z1, 6, CS_Z1)
        self.gelu(Z1, 24)
        if L == 0:
            prev = []
            for it in d['wsp']:
                self.use_wsp(it)
                self.sync(release=prev + [it], lds=True)
                prev = []
                self.dma(6)
        self.stamp('z1_epi')
        e('s_lshl_b32 s%d, s%d, 9' % (sT0, sC))
        e('s_add_u32 s%d, s%d, %d' % (sT0, sT0, Z2FLAG + L * 4096))
        e('v_lshrrev_b32 v%d, 1, v%d' % (W0 + 2, vL[0]))

        def chk4():
            e('v_cmp_ne_u32 s[%d:%d], s%d, v%d' % (sSt, sSt + 1, sTag, W0))
            e('v_cmp_ne_u32 vcc, s%d, v%d' % (sTag, W0 + 1))
            e('s_or_b64 vcc, vcc, s[%d:%d]' % (sSt, sSt + 1))
        self.poll(['buffer_load_dwordx2 v[%d:%d], v%d, s[%d:%d], s%d offen sc1' % (W0, W0 + 1, W0 + 2, S_WS, S_WS + 3, sT0)], chk4, 'z2')
        self.stamp('z2_ready')
        if self.stop_after == ('z2', L):
            return None
        e.comment('layer %d: spatial mixing' % L)
        self.open_gate('z2_%d' % L)
        self.dma(12)
        for j in range(4):
            e('v_mov_b32 v%d, v%d' % (TMP + j, vB))
        self.sync(need=[d['z2n'][0]])
        rel = self.gemm(d['z2n'], 4, 6, ACC, lambda k: vr(4 * k, 4, 'a'), 'T', cinit=lambda T: vr(TMP, 4))
        self.stamp('sp_loop')
        self.sync(release=rel)
        P = W0
        for i in range(12):
            a, z = ACC + 2 * i, Z1 + 2 * i
            e('v_pk_mul_f32 v[%d:%d], v[%d:%d], v[%d:%d]' % (a, a + 1, a, a + 1, z, z + 1))
            e('v_cvt_pk_bf16_f32 v%d, v%d, v%d' % (P + i, a, a + 1))
        e('s_mul_i32 s%d, s%d, 3072' % (sT0, sC))
        e('s_add_u32 s%d, s%d, s%d' % (sT0, sT0, sAct))
        e('s_add_u32 s%d, s%d, %d' % (sT0, sT0, (h0 + HOP_H) * ACT_H))
        self.row_publish(h0 + HOP_H, ['buffer_store_dwordx4 v[%d:%d], v%d, s[%d:%d], s%d offen offset:%d' % (P + 4 * i, P + 4 * i + 3, vL[0], S_WS, S_WS + 3, sT0, i * 1024) for i in range(3)],
                         ndma=self.o.get('pub_dma', 3))
        self.stamp('h_pub')
        if self.stop_after == ('h', L):
            return None
        e.comment('layer %d: gMLP output projection' % L)
        self.sync(need=[d['wout'][0]])
        self.row_wait(h0 + HOP_H)
        self.stamp('h_ready')
        if L == 0:
            self.pretouch(HOP_X2, False)
        rel = self.gemm(d['wout'], 4, 5, XT, self.areg, 'T', cinit=lambda T: vr(XT + 4 * T, 4), aq=self.aloads(h0 + HOP_H, 6, sOff6))
        self.stamp('wout_loop')
        if L == 0:
            self.sync(release=rel)
            self.publish80(HOP_X2, XT)
            self.stamp('x2_pub')
            return []
        fin = d['fin']
        assert fin.slot is not None
        a, b = TMP, TMP + 1
        e('v_mul_u32_u24 v%d, 176, v%d' % (a, vI16))
        e('v_lshrrev_b32 v%d, 4, v0' % b)
        e('v_lshl_add_u32 v%d, v%d, 3, v%d' % (a, b, a))
        e('s_add_u32 s%d, s%d, %d' % (sT0, sW6, fin.base))
        e('v_add_u32 v%d, s%d, v%d' % (a, sT0, a))
        for T in range(5):
            p = W0 + 2 * T
            e('v_cvt_pk_bf16_f32 v%d, v%d, v%d' % (p, XT + 4 * T, XT + 4 * T + 1))
            e('v_cvt_pk_bf16_f32 v%d, v%d, v%d' % (p + 1, XT + 4 * T + 2, XT + 4 * T + 3))
            e('ds_write_b64 v%d, v[%d:%d] offset:%d' % (a, p, p + 1, 32 * T))
        e('s_mul_i32 s%d, s2, %d' % (sT1, 16 * 1280))
        e('s_mul_i32 s%d, s%d, 160' % (sT2, sC))
        e('s_add_u32 s%d, s%d, s%d' % (sT1, sT1, sT2))
        for m in range(3):
            i, rw, ch, la, go = (A0 + 8 * m + j for j in range(5))
            e('v_add_u32 v%d, %d, v0' % (i, 64 * m))
            e('v_mul_u32_u24 v%d, 6554, v%d' % (rw, i))
            e('v_lshrrev_b32 v%d, 16, v%d' % (rw, rw))
            e('v_mul_u32_u24 v%d, 10, v%d' % (ch, rw))
            e('v_sub_u32 v%d, v%d, v%d' % (ch, i, ch))
            e('v_lshlrev_b32 v%d, 4, v%d' % (ch, ch))
            e('v_mul_u32_u24 v%d, 176, v%d' % (la, rw))
            e('v_add3_u32 v%d, v%d, v%d, s%d' % (la, la, ch, sT0))
            e('v_mul_u32_u24 v%d, 1280, v%d' % (go, rw))
            e('v_add_u32 v%d, v%d, v%d' % (go, go, ch))
            if m == 2:
                e('v_lshlrev_b32 v%d, 31, v%d' % (i, vHi))
                e('v_or_b32 v%d, v%d, v%d' % (go, go, i))
            e('ds_read_b128 v[%d:%d], v%d' % (W0 + 12 + 4 * m, W0 + 15 + 4 * m, la))
        for m in range(3):
            e('buffer_store_dwordx4 v[%d:%d], v%d, s[%d:%d], s%d offen' % (W0 + 12 + 4 * m, W0 + 15 + 4 * m, A0 + 8 * m + 4, S_OUT, S_OUT + 3, sT1))
        return []

    def build(self):
        e = self.e
        self.build_stream()
        xs = self.prologue()
        self.consts()
        self.pack_setup()
        self.stamp('setup')
        self.x_frags(xs)
        self.sync(need=[self.S[0]['kv'][0]], release=self.xitems, lds=True)
        self.stamp('x_ready')
        rel = self.layer(0, [])
        if rel is not None:
            self.layer(1, rel)
        e('s_add_u32 s0, s2, s%d' % sC)
        e('s_cmp_eq_u32 s0, 0')
        e('s_cselect_b32 s0, %d, 0x%x' % (EPOCH, OOB))
        e('buffer_store_dword v%d, v%d, s[%d:%d], s0 offen sc1' % (vTag, vOne, S_WS, S_WS + 3))
        if self.stamps:
            self.stamp('end')
            e('s_lshl_b32 s0, s2, 3')
            e('s_add_u32 s0, s0, s%d' % sC)
            e('s_lshl_b32 s0, s0, 8')
            e('s_add_u32 s0, s0, %d' % STAMP)
            e('v_lshlrev_b32 v%d, 2, v0' % TMP)
            e('buffer_store_dword v%d, v%d, s[%d:%d], s0 offen' % (vStamp, TMP, S_WS, S_WS + 3))
        e.label('L_abort')
        e.raw('  s_endpgm')
        for slow, lines, back in self.stubs:
            e.label(slow)
            for t in lines:
                e.raw('  ' + t)
            e.raw('  s_branch ' + back)
        head = ('; Fused LN + linear attention + gMLP, two layers, one persistent launch of 256 workgroups.\n'
                '; @launch grid=(256,1,1) block=(256,1,1) lds=%d\n'
                '.amdgcn_target "amdgcn-amd-amdhsa--gfx950"\n.text\n.globl %s\n.p2align 8\n.type %s,@function\n%s:\n' % (LDS_BYTES, NAME, NAME, NAME))
        tail = ('.section .rodata,"a"\n.p2align 6\n.amdhsa_kernel %s\n'
                '  .amdhsa_next_free_vgpr 512\n  .amdhsa_next_free_sgpr 102\n  .amdhsa_accum_offset 256\n'
                '  .amdhsa_group_segment_fixed_size 0\n  .amdhsa_kernarg_size 88\n  .amdhsa_user_sgpr_count 2\n'
                '  .amdhsa_user_sgpr_kernarg_segment_ptr 1\n  .amdhsa_system_sgpr_workgroup_id_x 1\n.end_amdhsa_kernel\n' % NAME)
        return head + e.text() + tail


if __name__ == '__main__':
    g = Gen(stamps='--stamps' in sys.argv)
    s = g.build()
    out = [a for a in sys.argv[1:] if not a.startswith('--')]
    open(out[0] if out else 'k.s', 'w').write(s)
    print('instructions', g.e.ninstr, 'nop states', g.e.nnop, 'bytes', len(s), 'est cycles', g.e.t)
```
